```python
import torch

def _softmax(x, axis=-1):
    return torch.softmax(x, dim=axis)
def _gelu(x):
    return torch.nn.functional.gelu(x, approximate="tanh")
def _silu(x):
    return torch.nn.functional.silu(x)
def _sigmoid(x):
    return torch.sigmoid(x)
def _layernorm(x, axis=-1, eps=1e-5):
    m = x.mean(dim=axis, keepdim=True)
    v = x.var(dim=axis, keepdim=True, unbiased=False)
    return (x - m) / torch.sqrt(v + eps)
def _scatter_add(tgt, idx, src, axis=0):
    return tgt.clone().index_add_(axis, idx, src)
def _segment_sum(src, seg, n):
    out = torch.zeros((n,) + src.shape[1:], dtype=src.dtype)
    return out.index_add_(0, seg, src)
def _pad(x, pw):
    flat = tuple(v for pair in reversed(pw) for v in pair)
    return torch.nn.functional.pad(x, flat)

kernel_name = 'concat_heads__ssm_conv_h3__compressed_kv_cla__prompt'

def setup_inputs():

    _w = (lambda a: (lambda t: t.to(torch.bfloat16) if t.is_floating_point() else t)(torch.as_tensor(a)))
    def _A_setup():
        B, S, D = 1, 2048, 512
        ks = 4
        return {
            "q": _w((lambda *s: torch.randn(*s, dtype=torch.bfloat16) * 0.05)(B, S, D)),
            "k": _w((lambda *s: torch.randn(*s, dtype=torch.bfloat16) * 0.1)(B, S, D)),
            "v": _w((lambda *s: torch.randn(*s, dtype=torch.bfloat16) * 0.1)(B, S, D)),
            "shift_k": _w((lambda *s: torch.randn(*s, dtype=torch.bfloat16) * 0.1)(D, ks) * 0.5),
            "ssm_k": _w((lambda *s: torch.randn(*s, dtype=torch.bfloat16) * 0.1)(D, S) * (1.0 / S ** 0.5)),
            "ssm_D": _w((lambda *s: torch.randn(*s, dtype=torch.bfloat16) * 0.1)(D)),
        }
    _A_in = _A_setup()

    def _B_setup():
        B, H, Sq, Sk, D, M = 1, 32, 2048, 2048, 128, 512
        Dc = 4 * D
        return {
            "x": _w((lambda *s: torch.randn(*s, dtype=torch.bfloat16) * 3.2)(B, Sq, M)),
            "c_kv": _w((lambda *s: torch.randn(*s, dtype=torch.bfloat16) * 0.05)(B, Sk, Dc)),
            "w_q": _w((lambda *s: torch.randn(*s, dtype=torch.bfloat16) * 3.2)(M, H, D) * (M ** -0.5)),
            "w_uk": _w((lambda *s: torch.randn(*s, dtype=torch.bfloat16) * 3.2)(Dc, H, D) * (Dc ** -0.5)),
            "w_uv": _w((lambda *s: torch.randn(*s, dtype=torch.bfloat16) * 0.05)(Dc, H, D) * (Dc ** -0.5)),
            "w_o": _w((lambda *s: torch.randn(*s, dtype=torch.bfloat16) * 0.05)(H, D, M) * ((H * D) ** -0.5)),
        }
    _B_in = _B_setup()

    return {
        "A_q": _A_in["q"],
        "A_k": _A_in["k"],
        "A_v": _A_in["v"],
        "A_shift_k": _A_in["shift_k"],
        "A_ssm_k": _A_in["ssm_k"],
        "A_ssm_D": _A_in["ssm_D"],
        "B_x": _B_in["x"],
        "B_c_kv": _B_in["c_kv"],
        "B_w_q": _B_in["w_q"],
        "B_w_uk": _B_in["w_uk"],
        "B_w_uv": _B_in["w_uv"],
        "B_w_o": _B_in["w_o"],
    }

def reference(A_q, A_k, A_v, A_shift_k, A_ssm_k, A_ssm_D, B_x, B_c_kv, B_w_q, B_w_uk, B_w_uv, B_w_o):
    def _A_ref(q, k, v, shift_k, ssm_k, ssm_D):
        B, S, D = q.shape
        ks = shift_k.shape[-1]
        k_pad = _pad(k, ((0, 0), (ks - 1, 0), (0, 0)))
        k_shift = torch.zeros_like(k)
        for t in range(ks):
            k_shift = k_shift + k_pad[:, t:t + S, :] * shift_k[:, ks - 1 - t][None, None, :]
        kv = k_shift * v
        L = 2 * S
        kv_pad = _pad(kv, ((0, 0), (0, S), (0, 0)))
        kf_pad = _pad(ssm_k, ((0, 0), (0, S)))
        kv_f = (lambda x, axes=(-2,-1): torch.fft.rfft2(x.float(), dim=axes))(kv_pad[:, None, :, :], axes=(1, 2))
        kf_f = (lambda x, axes=(-2,-1): torch.fft.rfft2(x.float(), dim=axes))(kf_pad[:, None, :], axes=(1, 2))
        kf_f = (lambda x, *d: x.permute(*d))(kf_f, 1, 2, 0)
        y_f = kv_f * kf_f[None, :, :, :]
        y = (lambda x, s, axes=(-2,-1): torch.fft.irfft2(x, s=s, dim=axes).to(torch.bfloat16))(y_f, (1, L), axes=(1, 2))[:, 0, :S, :]
        y = y + kv * ssm_D[None, None, :]
        return q * y

    def _B_ref(x, c_kv, w_q, w_uk, w_uv, w_o):
        B, Sq, M = x.shape[0], x.shape[1], x.shape[2]
        Sk = c_kv.shape[1]
        H, D = w_q.shape[1], w_q.shape[2]
        q = torch.einsum("bqm,mhd->bhqd", x, w_q)
        k = torch.einsum("bkc,chd->bhkd", c_kv, w_uk)
        v = torch.einsum("bkc,chd->bhkd", c_kv, w_uv)
        scores = torch.einsum("bhqd,bhkd->bhqk", q, k) * (D ** -0.5)
        off = Sk - Sq
        qi = torch.arange(Sq)[:, None]
        kj = torch.arange(Sk)[None, :]
        cmask = kj <= (qi + off)
        scores = torch.where(cmask[None, None], scores, -1e9)
        p = _softmax(scores, axis=-1)
        ctx = torch.einsum("bhqk,bhkd->bhqd", p, v)
        return torch.einsum("bhqd,hdm->bqm", ctx, w_o)

    a = _A_ref(A_q, A_k, A_v, A_shift_k, A_ssm_k, A_ssm_D)
    b = _B_ref(B_x, B_c_kv, B_w_q, B_w_uk, B_w_uv, B_w_o)
    return torch.concatenate([a, b], axis=-1)
```

```python
import re

TRANS = ('v_exp_f32','v_log_f32','v_rcp_f32','v_rsq_f32','v_sqrt_f32','v_sin_f32','v_cos_f32')
_reg = re.compile(r'^(-?)(?:abs\()?([vas])(?:(\d+)|\[(\d+):(\d+)\])\)?$')

def regs(tok):
    tok = tok.strip()
    if tok == 'vcc': return [('s','vcc0'),('s','vcc1')]
    if tok == 'exec': return [('s','exec0'),('s','exec1')]
    if tok == 'm0': return [('s','m0')]
    m = _reg.match(tok)
    if not m: return []
    k = m.group(2)
    if m.group(3) is not None: return [(k,int(m.group(3)))]
    return [(k,i) for i in range(int(m.group(4)), int(m.group(5))+1)]

class I:
    __slots__=('text','op','kind','wr','rd','srcC','srcAB','tag','ops')
    def __init__(self, text, tag=None):
        self.text = text; self.tag = tag
        t = text.split(';')[0].strip()
        self.wr=[]; self.rd=[]; self.srcC=[]; self.srcAB=[]
        if t.endswith(':') or t.startswith('.') or not t:
            self.op=''; self.kind='label'; self.ops=[]; return
        sp = t.split(None,1)
        op = sp[0]; self.op = op
        rest = sp[1] if len(sp)>1 else ''
        rest = rest.split(' op_sel')[0]
        ops = [o.strip() for o in rest.split(',')] if rest else []
        mods = ''
        if ops:
            last = ops[-1].split(None,1)
            ops[-1] = last[0]
            mods = last[1] if len(last)>1 else ''
        self.ops = ops
        R = lambda l: [r for o in l for r in regs(o)]
        if op.startswith('v_mfma'):
            self.kind='mfma'; self.wr=R(ops[:1]); self.rd=R(ops[1:]); self.srcC=R(ops[3:4]); self.srcAB=R(ops[1:3])
        elif op.startswith('ds_read') or op.startswith('ds_bpermute') or op.startswith('ds_swizzle'):
            self.kind='ds'; self.wr=R(ops[:1]); self.rd=R(ops[1:])
        elif op.startswith('ds_'):
            self.kind='ds'; self.rd=R(ops)
        elif op.startswith('buffer_load') or op.startswith('global_load'):
            self.kind='vmem'
            if ' lds' in (' '+mods) or op.startswith('global_load_lds'):
                self.rd=R(ops)+[('s','m0')]
            else:
                self.wr=R(ops[:1]); self.rd=R(ops[1:])
        elif op.startswith('buffer_atomic') or op.startswith('global_atomic'):
            self.kind='vmem'; self.rd=R(ops)
            if 'sc0' in mods and op.startswith('buffer_atomic'): self.wr=R(ops[:1])
        elif op.startswith('buffer_') or op.startswith('global_'):
            self.kind='vmem'; self.rd=R(ops)
        elif op.startswith('v_'):
            self.kind='valu'
            self.wr=R(ops[:1]); self.rd=R(ops[1:])
            if 'permlane' in op and 'swap' in op:
                self.wr=R(ops[:2]); self.rd=R(ops[:2])
            if op.startswith('v_fmac') or op.startswith('v_dot2c') or op.startswith('v_writelane'):
                self.rd += self.wr
            if op.startswith('v_add_co') or op.startswith('v_addc_co') or op.startswith('v_sub_co'):
                self.wr=R(ops[:2]); self.rd=R(ops[2:])
            if op=='v_nop': pass
        elif op.startswith('s_load') or op in ('s_memtime','s_memrealtime') or op.startswith('s_atomic'):
            self.kind='smem'; self.wr=R(ops[:1]); self.rd=R(ops[1:])
        elif op in ('s_waitcnt','s_barrier','s_nop','s_setprio','s_endpgm','s_sleep') or op.startswith('s_cbranch') or op=='s_branch':
            self.kind='sctl'
        elif op.startswith('s_cmp') or op.startswith('s_bitcmp'):
            self.kind='salu'; self.rd=R(ops)
        elif op.startswith('s_'):
            self.kind='salu'; self.wr=R(ops[:1]); self.rd=R(ops[1:])
            if 'saveexec' in op: self.wr += regs('exec')
            if op in ('s_addk_i32','s_mulk_i32'): self.rd += self.wr
        else:
            raise ValueError('unknown op '+text)
    def states(self):
        if self.kind=='label': return 0
        if self.op=='s_nop': return int(self.ops[0],0)+1
        return 1
    def passes(self):
        if '16x16x32' in self.op: return 4
        if '32x32x16' in self.op: return 8
        raise ValueError(self.op)
    def __repr__(self): return self.text

def parse(lines):
    if isinstance(lines,str): lines = lines.split('\n')
    return [l if isinstance(l,I) else I(l.strip()) for l in lines if (isinstance(l,I) or l.strip())]

def check(trace, name='', verbose=True, idx=False):
    probs=[]
    tr=[x for x in trace if x.kind!='label']
    pos=[0]
    for x in tr: pos.append(pos[-1]+x.states())
    W=24
    for j,b in enumerate(tr):
        brd=set(b.rd); bwr=set(b.wr)
        for i in range(j-1,max(-1,j-W-1),-1):
            d=pos[j]-pos[i+1]
            if d>=20: break
            a=tr[i]; awr=set(a.wr)
            need=0; why=''
            def req(n,w):
                nonlocal need,why
                if n>need: need=n; why=w
            if a.kind=='mfma':
                p=a.passes(); n1={4:8,8:12}[p]; n2={4:6,8:10}[p]; n3={4:3,8:7}[p]
                if b.kind=='mfma':
                    if awr & set(b.srcAB): req(n1,'mfmaD->mfmaAB')
                    if awr & set(b.srcC):
                        if not (a.wr==b.srcC and a.passes()==b.passes()): req(n2,'mfmaD->mfmaC overlap')
                    elif awr & bwr: req(n2,'mfmaD->mfmaD WAW')
                elif b.kind in ('valu','ds','vmem'):
                    if awr & (brd|bwr): req(n1,'mfmaD->use')
                    if b.kind=='valu' and set(a.srcC) & bwr: req(n3,'mfmaC WAR')
            if a.kind=='valu':
                vw={r for r in awr if r[0] in 'va'}; sw={r for r in awr if r[0]=='s'}
                if b.kind=='mfma' and vw & brd: req(2,'valu->mfma')
                if b.kind=='valu':
                    if a.op.replace('_e32','').replace('_e64','') in TRANS and vw & brd and b.op not in TRANS: req(1,'trans')
                    if a.op in TRANS and vw & brd and b.op in TRANS: req(1,'trans-trans(cons)')
                    if 'permlane' in b.op and vw & brd: req(2,'valu->permlane')
                    if ('readlane' in b.op or 'readfirstlane' in b.op) and vw & brd: req(1,'valu->readlane')
                    if ('dpp' in b.text or 'row_' in b.text or 'quad_perm' in b.text) and vw & brd: req(2,'valu->dpp')
                    if sw & brd: req(2,'valu sgpr->valu')
                    if 'sdwa' in a.text or 'op_sel' in a.text:
                        if vw & brd: req(1,'opsel')
                if b.kind=='vmem' and sw & brd: req(5,'valu sgpr->vmem')
                if b.kind=='mfma' and (('s','exec0') in sw): req(4,'valu exec->mfma')
            if a.kind=='salu' and ('s','m0') in awr and ('s','m0') in brd and b.kind in('vmem','ds'): req(1,'m0')
            if a.kind=='vmem' and ('store' in a.op) and ('x4' in a.op or 'x3' in a.op):
                data=set(regs(a.ops[0] if a.op.startswith('buffer') else a.ops[1]))
                if data & bwr: req(2 if b.kind=='valu' else 1,'store data WAR')
            if d<need and idx: probs.append((j,need-d))
            elif d<need:
                probs.append(f'{name}: hazard {why} need {need} got {d}: [{a.text}] -> [{b.text}]')
    if idx: return probs
    vm=[]; lg=[]
    for j,b in enumerate(tr):
        if b.op=='s_waitcnt':
            t=b.text
            m=re.search(r'vmcnt\((\d+)\)',t)
            if m:
                n=int(m.group(1))
                while len(vm)>n: vm.pop(0)
            m=re.search(r'lgkmcnt\((\d+)\)',t)
            if m:
                n=int(m.group(1))
                if any(x.kind=='smem' for x in lg) and n>0:
                    probs.append(f'{name}: counted lgkmcnt with smem outstanding: {t}')
                while len(lg)>n: lg.pop(0)
            continue
        touch=set(b.rd)|set(b.wr)
        for q in (vm,lg):
            for x in q:
                if set(x.wr) & touch:
                    probs.append(f'{name}: unwaited load [{x.text}] -> [{b.text}]')
        if b.kind=='vmem':
            vm.append(b)
            if len(vm)>63: probs.append(f'{name}: vmcnt overflow at {b.text}'); vm.pop(0)
        if b.kind in('ds','smem'):
            lg.append(b)
            if len(lg)>15 and b.kind=='ds':
                pass
    if verbose:
        for p in probs[:20]: print(p)
    return probs

def lds_check(trace, name=''):
    import re
    probs=[]
    vm=[]; lg=[]
    W=[]
    R=[]
    allw={}
    for pos,(x,base) in enumerate(trace):
        if x.tag and x.tag[0]=='W':
            k=(x.tag[1], None if x.tag[2] is None else x.tag[2]+base); allw.setdefault(k,[]).append(pos)
    for pos,(x,base) in enumerate(trace):
        if x.kind=='label': continue
        if x.op=='s_waitcnt':
            m=re.search(r'vmcnt\((\d+)\)',x.text)
            if m:
                while len(vm)>int(m.group(1)):
                    e=vm.pop(0)
                    if e: e['ret']=True
            m=re.search(r'lgkmcnt\((\d+)\)',x.text)
            if m:
                while len(lg)>int(m.group(1)):
                    e=lg.pop(0)
                    if e: e['ret']=True
            continue
        if x.op=='s_barrier':
            for e in W:
                if e['ret']: e['pub']=True
            for e in R:
                if e['ret']: e['pub']=True
            R=[e for e in R if not e['pub']]
            continue
        e=None
        if x.tag and x.tag[0] in ('R','W'):
            t,kind,rel,lo,hi,sh=x.tag
            key=(kind, None if rel is None else rel+base)
            e=dict(key=key,lo=lo,hi=hi,ret=False,pub=False,sh=sh,txt=x.text)
            if t=='W':
                for r in R:
                    if r['lo']<hi and lo<r['hi'] and r['key']!=key:
                        priv = (not sh) and (not r['sh']) and r['key'][0]==kind
                        if not (priv and r['ret']):
                            probs.append(f'{name}: WAR {key} over open read {r["key"]} [{x.text}]')
                W=[w for w in W if not (w['lo']<hi and lo<w['hi'] and w['key']!=key)]
                W.append(e)
            else:
                ws=[w for w in W if w['key']==key]
                if len(ws)!=len(allw.get(key,[])) or not ws:
                    probs.append(f'{name}: read of {key} with {len(ws)}/{len(allw.get(key,[]))} writes live [{x.text}]')
                for w in ws:
                    if not (w['pub'] if sh else w['ret']):
                        probs.append(f'{name}: read of {key} before publish [{x.text}]'); break
                R.append(e)
        if x.kind=='vmem': vm.append(e)
        if x.kind in('ds','smem'): lg.append(e)
    for p in probs[:10]: print(p)
    return probs

def fix_hazards(code, prefix=()):
    import re
    code=list(code)
    for _ in range(200):
        pr=[p for p in check(list(prefix)+code,'',verbose=False,idx=True) if p[0]>=len([x for x in prefix if x.kind!='label'])]
        if not pr: return code
        j,short=pr[0]
        j-=len([x for x in prefix if x.kind!='label'])
        real=[k for k,x in enumerate(code) if x.kind!='label'][j]
        code.insert(real,I(f's_nop {short-1}'))
    raise RuntimeError('fix_hazards did not converge')
```

```python
from asm import I, parse, check
from sched import F, schedule, lgkm_waits, cycles
MF = 'v_mfma_f32_16x16x32_bf16'

V_L16=1
V_KA=2
V_VA=4
V_NINF=6
V_T=8
V_L=16
V_NM=24
V_S=48
V_P=64
V_OO=128
V_OS=192
A_Q=0
A_OP=96
A_K=160
A_V=192
QS={1:[0,1,2,3],2:[0,1,4,5]}
S_WAVE=20; S_H=21; S_I=22; S_W4K=23; S_KO=24; S_VO=25; S_CNT=26; S_PASS=27; S_T=28
S_MK=32
S_ML=64
SRD_WS=16
KSLOT=lambda u:(u%2)*32768
VSLOT=lambda u:(u%2)*32768
DMAFL=''

def qreg(b,ds): return A_Q+b*16+ds*4
def oreg(b,dt):
    if b<2: x=V_OO+(b*8+dt)*4; return f'v[{x}:{x+3}]'
    if b<4: x=V_OS+((b-2)*8+dt)*4; return f'v[{x}:{x+3}]'
    x=A_OP+((b-4)*8+dt)*4; return f'a[{x}:{x+3}]'
def preg(par,slot,ks): return V_P+par*32+slot*8+ks*4
def rng(k,b,n=4): return f'{k}[{b}:{b+n-1}]'

class Step:
    def __init__(s, ph, par, kind='plain', e=None, first=()):
        s.ph=ph; s.par=par; s.kind=kind; s.first=set(first)
        s.addr = 0 if ph==1 else 1
        s.koff=[kt*4096 for kt in range(4)]
        s.voff=[0,1024]
        full=[(sl,None) for sl in range(4)]
        if kind=='plain':
            s.tiles=[list(full) for _ in range(4)]
        elif kind=='A':
            s.tiles=[[(sl, ('k',kt) if sl==2 else None) for sl in range(4)] for kt in range(4)]
        elif kind=='B':
            s.tiles=[[(sl, ('k',kt) if sl==3 else None) for sl in (0,1,3)] for kt in range(4)]
        elif kind=='L':
            s.addr=0
            if e==0:
                slotB={0:0,3:1,1:2,2:3}; kss=[0,3]
            else:
                slotB={1:0,2:1,0:2,3:3}; kss=[1,2]
            s.tiles=[]; s.koff=[]; s.voff=[]
            for ks in kss:
                s.voff.append((ks>>1)*16384+(ks&1)*1024)
                for hf in range(2):
                    s.koff.append((2*ks+hf)*4096)
                    row=[(slotB[B], ('l',hf) if B==ks else None) for B in range(ks,4)]
                    row.sort(key=lambda x:-x[0])
                    s.tiles.append(row)
        s.pv={sl:[ks for ks in range(2) if any(x[0]==sl for x in s.tiles[2*ks])] for sl in range(4)}
    def blk(s,slot): return QS[s.ph][slot]

def kread(st,u,kt,ds,ring):
    b=A_K+(ring%2)*16+ds*4
    return f'ds_read_b128 {rng("a",b)}, v{V_KA+st.addr} offset:{KSLOT(u)+st.koff[kt]+ds*1024}'
def vread(st,u,dt,ks):
    b=A_V+(dt%4)*8+ks*4
    return f'ds_read_b128 {rng("a",b)}, v{V_VA+st.addr} offset:{VSLOT(u)+st.voff[ks]+dt*2048}'
def dma_ops(kind,u,ntile):
    so = S_KO if kind=='k' else S_VO
    base = (0 if kind=='k' else 65536) + (u%2)*32768
    ops=[]
    for t in range(ntile):
        for n in range(4):
            pre=[]
            if n==0: pre=[f's_add_u32 m0, s{S_W4K}, {base+t*16384}', f's_add_u32 s{so}, s{so}, 16384']
            ops.append((pre, I(f'buffer_load_dwordx4 v{V_L16}, s[{SRD_WS}:{SRD_WS+3}], s{so} offen offset:{n*1024}{DMAFL} lds', tag=('W',kind,u,base,base+32768,True))))
    return ops

def tile_ops(sreg,lreg,pdst,alt=False):
    e=[f'v_exp_f32 v{sreg+r}, v{sreg+r}' for r in range(4)]
    a=[f'v_add_f32 v{lreg}, v{lreg}, v{sreg+r}' for r in range(4)]
    c=[f'v_cvt_pk_bf16_f32 v{pdst+j}, v{sreg+2*j}, v{sreg+2*j+1}' for j in range(2)]
    if not alt: return [(e[0],0),(e[1],2),(a[0],5),(a[1],6),(c[0],7),(e[2],8),(e[3],10),(a[2],13),(a[3],14),(c[1],15)]
    return [(e[0],0),(e[1],2),(a[0],4),(a[1],5),(e[2],6),(e[3],8),(c[0],10),(a[2],11),(a[3],13),(c[1],15)]

def block(iters, entry, extraV=None, extraD=None, name='', loopS=(), keep_last=True):
    mf=[]; D=[]; S=[]; pre={}
    T=[]
    if entry is not None: T.append(dict(r=0,t=entry,plain=True,alt=False))
    carry=[]; masks=[]
    for itn,it in enumerate(iters):
        u=it['u']; qk=it['qk']; pv=it['pv']
        plain = (qk is not None and pv is not None and qk.kind in('plain','A') and pv.kind in('plain','A'))
        chains=[]
        if qk:
            for kt in range(4):
                for (sl,mk) in qk.tiles[kt]: chains.append((kt,sl,mk))
        pvc=[]
        if pv:
            order=[0,1,2,3] if pv.kind!='L' else [3,2,0,1]
            for dt in range(8):
                for sl in order:
                    if pv.pv[sl]: pvc.append((dt,sl,pv.pv[sl]))
        nch=len(chains)
        nper=nch+it.get('tailpv',0) if chains else 1
        npvm=sum(len(c[2]) for c in pvc)
        g_it=len(mf)
        k_first={}; k_last={}; v_first={}; v_last={}; o_last={}
        done=0; ip=0
        sring=(16-nch)%4
        for p in range(nper):
            if p<nch:
                kt,sl,mk=chains[p]; b=qk.blk(sl)
                sreg=V_S+(sring%4)*4; sring+=1
                if mk is not None: masks.append((len(T),len(mf),sreg,mk,b))
                for ds in range(4):
                    C = rng('v',V_NM+b*4) if (mk is None and ds==0) else rng('v',sreg)
                    k_first.setdefault((kt,ds),len(mf)); k_last[(kt,ds)]=len(mf)
                    mf.append(f'{MF} {rng("v",sreg)}, {rng("a",A_K+(kt%2)*16+ds*4)}, {rng("a",qreg(b,ds))}, {C}')
                T.append(dict(r=len(mf)-1+5,t=(sreg,V_L+b,preg(qk.par,sl,kt>>1)+2*(kt&1)),plain=plain,alt=(plain and p==11)))
            tgt=(npvm*(p+1)+nper-1)//nper
            while ip<len(pvc) and done<tgt:
                dt,sl,kss=pvc[ip]; ip+=1; b=pv.blk(sl)
                for j,ks in enumerate(kss):
                    C='0' if (b in pv.first and j==0) else oreg(b,dt)
                    v_first.setdefault((dt,ks),len(mf)); v_last[(dt,ks)]=len(mf); o_last[(b,dt)]=len(mf)
                    mf.append(f'{MF} {oreg(b,dt)}, {rng("a",A_V+(dt%4)*8+ks*4)}, {rng("v",preg(pv.par,sl,ks))}, {C}')
                    done+=1
        g_end=len(mf)
        it['g0']=g_it; it['g1']=g_end; it['o_last']=o_last
        vf=lambda d:min(v for (dd,ks),v in v_first.items() if dd==d)
        vl=lambda d:max(v for (dd,ks),v in v_last.items() if dd==d)
        if plain: gb=g_it+12*8+5
        else:
            cand=[g_it]
            if chains: cand.append(k_first[(3,0)])
            if pvc: cand.append(vf(6))
            gb=max(cand)+4
        it['gb']=gb
        ev=[]
        def tag(f,*t): f.i.tag=t; return f
        def spread(ops,lo,hi):
            n=len(ops)
            for j,(o,t) in enumerate(ops):
                g=lo+(hi-lo)*j//max(n,1)
                ev.append((g,tag(F(o,lo=g,hi=g+1),*t)))
        KR=lambda st,uu,kt,ds:(kread(st,uu,kt,ds,kt),('R','k',uu,KSLOT(uu),KSLOT(uu)+32768,True))
        VR=lambda st,uu,dt,ks:(vread(st,uu,dt,ks),('R','v',uu,65536+VSLOT(uu),65536+VSLOT(uu)+32768,True))
        if plain:
            for p in range(16):
                gk=g_it+p*8+(2 if p!=12 else 6); gv=g_it+p*8+(6 if p!=12 else 7)
                kt=p//4+1; ds=p%4
                o=None
                if kt<4: o=KR(qk,u+1,kt,ds)
                elif it.get('nk'): o=KR(it['nk'],u+2,0,ds)
                if o: ev.append((gk,tag(F(o[0],lo=gk,hi=gk),*o[1])))
                dt=p//2+2; ks=p%2
                o=VR(pv,u,dt,ks) if dt<8 else VR(it['nv'],u+1,dt-8,ks)
                ev.append((gv,tag(F(o[0],lo=gv,hi=gv),*o[1])))
        else:
            if chains:
                for kt in range(1,4):
                    lo = k_last[(kt-2,3)] if kt>=2 else g_it
                    hi = k_first[(kt,0)]-3
                    spread([KR(qk,u+1,kt,ds) for ds in range(4)], lo, max(hi,lo))
            if pvc:
                for dt in range(2,8):
                    spread([VR(pv,u,dt,ks) for ks in range(2)], vf(dt-2), vf(dt-1))
            kk=[KR(it['nk'],u+2,0,ds) for ds in range(4)] if it.get('nk') else []
            vv=[VR(it['nv'],u+1,dt,ks) for dt in range(2) for ks in range(2)] if it.get('nv') else []
            tailops=[]
            for j in range(4):
                if kk: tailops.append(kk[j])
                if vv: tailops.append(vv[j])
            if tailops:
                assert gb+1+len(tailops)<=g_end+2,(name,gb,g_end)
                if chains: assert gb>=k_last[(2,3)]
                if pvc: assert gb>=vl(5)
                spread(tailops, gb+1, g_end-1)
        if it.get('bar',True):
            pre.setdefault(gb-1,[]).append(f's_waitcnt vmcnt({it.get("vm",0)}) lgkmcnt(0)')
            pre.setdefault(gb,[]).append('s_barrier')
        def place_dma(ops,gaps):
            prev=None
            for k,((prs,txt),g) in enumerate(zip(ops,gaps)):
                if prs:
                    if plain or prev is None:
                        for j,x in enumerate(prs): S.append(F(x,lo=g-3+j,hi=g-2+j))
                    else: prev.post=[I(x) for x in prs]
                prev=F(txt,lo=g,hi=g if plain else g+1)
                ev.append((g,prev))
        if itn==0: carry=it.get('carry',[])
        if carry:
            gaps=[g_it+3+4*j for j in range(len(carry))]
            assert gaps[-1]<gb-8,(name,gaps,gb)
            place_dma(carry,gaps)
        new=[]
        for kind,nt in it.get('dma',[]):
            new+=dma_ops(kind,(u+3) if kind=='k' else (u+2),nt)
        nnow=min(len(new),6)
        if plain: gaps=[g_it+13*8+3+4*j for j in range(nnow)]
        else:
            lo=gb+4; gaps=[min(lo+(g_end-1-lo)*j//6,g_end-1) for j in range(nnow)]
        place_dma(new[:nnow],gaps)
        carry=new[nnow:]
        D+=ev
    n=len(mf)
    pend=None
    if keep_last and T and iters[-1]['qk'] is not None:
        last=T.pop(); pend=last['t']; rend=n
    else: rend=None
    V=[]
    mk_at={m[0]-2:m for m in masks}
    for k,t in enumerate(T):
        r=t['r']; r1=T[k+1]['r'] if k+1<len(T) else (rend if rend is not None else r+8)
        r=min(r,n-1); L=max(r1-r,0)
        if k in mk_at:
            _,gm,sreg,mk,b=mk_at.pop(k)
            for rr in range(4):
                sm = (S_MK+(mk[1]*4+rr)*2) if mk[0]=='k' else (S_ML+(mk[1]*4+rr)*2)
                V.append(F(f'v_cndmask_b32 v{sreg+rr}, v{V_NINF}, v{V_NM+b*4}, s[{sm}:{sm+1}]',lo=max(0,gm-9),hi=max(0,gm-3)))
        fixed = t['plain'] and L==8
        for txt,pos in tile_ops(*t['t'],t['alt']):
            hi=min(r+pos*L//16,n-1)
            V.append(F(txt,lo=hi if fixed else r,hi=hi))
    assert not mk_at,(name,mk_at)
    if extraV: V=extraV(V,iters,n)
    if extraD: D+=extraD(iters,n)
    mfi=[I(x) for x in mf]
    for f in V:
        w=set(f.i.wr)
        if f.i.op.startswith('v_cvt_pk') or f.i.op.startswith('v_cndmask'):
            for g in range(f.lo+1,n):
                if w & set(mfi[g].rd):
                    f.hi=min(f.hi,max(g-3,0)); break
    for j in range(len(V)-2,-1,-1): V[j].hi=min(V[j].hi,V[j+1].hi)
    for f in V:
        if f.hi<f.lo: f.lo=f.hi
    D.sort(key=lambda e:e[0]); D=[e[1] for e in D]
    for j,x in enumerate(loopS): S.append(F(x,lo=n-8+j,hi=n-4+j))
    S.sort(key=lambda f:f.lo)
    code,over=schedule(mfi,V,D,S,pre)
    return code,pend,carry,over
```

```python
from asm import I, parse, check, fix_hazards
from sched import F, schedule, lgkm_waits, cycles
from k1 import srd
MF='v_mfma_f32_16x16x32_bf16'
WS_U=48<<20; UR=4224
WS_Y=54<<20

def tile_ids(sx,sj,sw,vt,lane):
    return [f's_and_b32 s{sx}, s2, 7', f's_lshr_b32 s{sj}, s2, 3',
            f'v_and_b32 v{vt+1}, 31, {lane}', f'v_lshrrev_b32 v{vt+2}, 5, {lane}', f'v_lshlrev_b32 v{vt+2}, 3, v{vt+2}',
            f's_lshl_b32 s{sj+1}, s{sj}, 6', f's_lshl_b32 s{sj+2}, s{sw}, 4', f's_add_u32 s{sj+1}, s{sj+1}, s{sj+2}', f'v_add_u32 v{vt+2}, s{sj+1}, v{vt+2}',
            f's_lshl_b32 s{sj+1}, s{sx}, 5', f'v_add_u32 v{vt+1}, s{sj+1}, v{vt+1}',
            f'v_lshlrev_b32 v{vt}, 10, v{vt+2}', f'v_lshl_add_u32 v{vt}, v{vt+1}, 2, v{vt}']

def step1(sw, lane, vb, sb, stfl=''):
    sK=sb; sV=sb+4; sS=sb+8; sW=sb+12; sp=sb+16; sx=sb+24; sj=sb+25
    c=[f's_load_dwordx4 s[{sp}:{sp+3}], s[0:1], 8', f's_load_dwordx2 s[{sp+4}:{sp+5}], s[0:1], 24', f's_load_dwordx2 s[{sp+6}:{sp+7}], s[0:1], 112']
    A=vb
    c+=tile_ids(sx,sj,sw,A,lane)
    c+=[f'v_subrev_u32 v{A+3}, 4096, v{A}', f'v_add_u32 v{A+4}, 4096, v{A}', f'v_lshlrev_b32 v{A+5}, 4, v{A+1}']
    c+=['s_waitcnt lgkmcnt(0)']+srd(sK,sp,2048*1024)+srd(sV,sp+2,2048*1024)+srd(sS,sp+4,4096)+srd(sW,sp+6,64<<20)
    K=vb+8; Vv=K+12; W=Vv+10
    W=(W+1)//2*2
    loads=[]
    loads.append(f'buffer_load_dwordx4 v[{W}:{W+3}], v{A+5}, s[{sS}:{sS+3}], 0 offen')
    for r in range(12):
        base=A+3 if r<4 else (A if r<8 else A+4)
        loads.append(f'buffer_load_dword v{K+r}, v{base}, s[{sK}:{sK+3}], 0 offen offset:{(r%4)*1024}')
    for r in range(3,12):
        base=A+3 if r<4 else (A if r<8 else A+4)
        loads.append(f'buffer_load_dword v{Vv+r-3}, v{base}, s[{sV}:{sV+3}], 0 offen offset:{(r%4)*1024}')
    comp=[]
    WF=W+4; KF=WF+4; U=KF+12; O=(U+9+1)//2*2
    comp+=[f'v_mul_u32_u24 v{A+6}, {4*UR}, v{A+1}', f'v_sub_u32 v{A+7}, 2040, v{A+2}', f'v_lshl_add_u32 v{A+6}, v{A+7}, 1, v{A+6}', f'v_add_u32 v{A+6}, {WS_U}, v{A+6}']
    for ch in range(2):
        un=(lambda d,s: f'v_lshlrev_b32 v{d}, 16, v{s}') if ch==0 else (lambda d,s: f'v_and_b32 v{d}, 0xffff0000, v{s}')
        for j in range(4):
            src=W+2*ch+j//2
            comp.append(f'v_lshlrev_b32 v{WF+j}, 16, v{src}' if j%2==0 else f'v_and_b32 v{WF+j}, 0xffff0000, v{src}')
        for r in range(12): comp.append(un(KF+r,K+r))
        for t in range(9):
            comp+=[f'v_mul_f32 v{U+t}, v{KF+t}, v{WF+3}', f'v_fmac_f32 v{U+t}, v{KF+t+1}, v{WF+2}', f'v_fmac_f32 v{U+t}, v{KF+t+2}, v{WF+1}', f'v_fmac_f32 v{U+t}, v{KF+t+3}, v{WF}',
                   un(KF+t,Vv+t), f'v_mul_f32 v{U+t}, v{U+t}, v{KF+t}']
        o=O+ch*8
        for e in range(4): comp.append(f'v_cvt_pk_bf16_f32 v{o+e}, v{U+8-2*e}, v{U+7-2*e}')
        for e in range(4): comp.append(f'v_cvt_pk_bf16_f32 v{o+4+e}, v{U+7-2*e}, v{U+6-2*e}')
        comp+=[f's_mov_b32 s{sj+1}, {ch*2*UR}', f's_mov_b32 s{sj+2}, {ch*2*UR+UR}',
               f'buffer_store_dwordx4 v[{o}:{o+3}], v{A+6}, s[{sW}:{sW+3}], s{sj+1} offen{stfl}',
               f'buffer_store_dwordx4 v[{o+4}:{o+7}], v{A+6}, s[{sW}:{sW+3}], s{sj+2} offen{stfl}']
    Z=O+16
    comp+=[f'v_mov_b32 v{Z+e}, 0' for e in range(4)]
    comp+=[f'v_cmp_eq_u32 vcc, 0, v{A+2}', f'v_mov_b32 v{A+7}, 0x40000000', 's_nop 0', f'v_cndmask_b32 v{A+7}, v{A+7}, v{A+6}, vcc']
    for q in range(4):
        comp+=[f's_mov_b32 s{sj+1}, {q*UR}', f'buffer_store_dwordx4 v[{Z}:{Z+3}], v{A+7}, s[{sW}:{sW+3}], s{sj+1} offen offset:16{stfl}']
    return c,loads,comp

CS=4160; HB=8*CS+512; CHB=HB+4096
def step2(sw, lane, l16, vb, sb, lds0, srd_ws, ldfl='', stfl=''):
    sH=sb; sp=sb+4; st=sb+6
    A=vb
    c=[f's_load_dwordx2 s[{sp}:{sp+1}], s[0:1], 32',
       f's_and_b32 s{st}, s2, 7', f's_lshl_b32 s{st}, s{st}, 6', f's_lshr_b32 s{st+1}, s2, 3', f's_lshl_b32 s{st+1}, s{st+1}, 1', f's_add_u32 s{st}, s{st}, s{st+1}',
       f's_lshr_b32 s{st+1}, s{sw}, 1', f's_add_u32 s{st}, s{st}, s{st+1}',
       f's_mul_i32 s{st+1}, s{st+1}, {CHB}', f's_add_u32 s{st+1}, s{st+1}, {lds0}',
       f's_and_b32 s{st+2}, s{sw}, 1',
       's_waitcnt lgkmcnt(0)']+srd(sH,sp,512*4096)
    c+=[f's_mul_i32 s{st+3}, s{st}, {2*UR}', f's_mul_i32 s{st+4}, s{st+2}, {UR}', f's_add_u32 s{st+3}, s{st+3}, s{st+4}', f's_add_u32 s{st+3}, s{st+3}, {WS_U}',
        f's_mul_i32 s{st+4}, s{st+2}, {CS}', f's_add_u32 s{st+4}, s{st+4}, s{st+1}']
    tagW=('W','cv',None,lds0,lds0+2*CHB,True); tagR=('R','cv',None,lds0,lds0+2*CHB,True)
    for q in range(4):
        c+=[f's_add_u32 m0, s{st+4}, {q*2*CS}', f's_add_u32 s{st+5}, s{st+3}, {q*4}']
        for n in range(4): c.append(I(f'buffer_load_dwordx4 v{l16}, s[{srd_ws}:{srd_ws+3}], s{st+5} offen offset:{n*1024}{ldfl} lds',tag=tagW))
    c+=[f's_lshl_b32 s{st+4}, s{st+2}, 11', f's_lshl_b32 s{st+5}, s{st}, 12', f's_add_u32 s{st+5}, s{st+5}, s{st+4}', f's_add_u32 s{st+4}, s{st+4}, s{st+1}', f's_add_u32 m0, s{st+4}, {HB}','s_nop 0']
    for n in range(2): c.append(I(f'buffer_load_dwordx4 v{l16}, s[{sH}:{sH+3}], s{st+5} offen offset:{n*1024} lds',tag=tagW))
    c+=[f'v_mov_b32 v{A+e}, 0' for e in range(4)]
    c+=[f'v_and_b32 v{A+4}, 7, {lane}', f'v_mul_u32_u24 v{A+4}, {CS}, v{A+4}', f'v_add_u32 v{A+4}, 4096, v{A+4}',
        f'v_add_u32 v{A+5}, {8*CS-512}, v{l16}', f'v_cmp_gt_u32 vcc, 32, {lane}','s_nop 1', f'v_cndmask_b32 v{A+4}, v{A+5}, v{A+4}, vcc', f'v_add_u32 v{A+4}, s{st+1}, v{A+4}',
        I(f'ds_write_b128 v{A+4}, v[{A}:{A+3}]',tag=tagW)]
    c+=[f'v_and_b32 v{A}, 7, {lane}', f'v_sub_u32 v{A}, 7, v{A}', f'v_mul_u32_u24 v{A}, {CS}, v{A}',
        f'v_lshrrev_b32 v{A+1}, 5, {lane}', f'v_lshlrev_b32 v{A+1}, 1, v{A+1}', f'v_bfe_u32 v{A+2}, {lane}, 3, 1', f'v_add_u32 v{A+1}, v{A+1}, v{A+2}',
        f'v_bfe_u32 v{A+2}, {lane}, 4, 1', f'v_sub_u32 v{A+1}, v{A+2}, v{A+1}', f'v_add_u32 v{A+1}, 19, v{A+1}',
        f's_lshl_b32 s{st+3}, s{st+2}, 4', f'v_subrev_u32 v{A+1}, s{st+3}, v{A+1}',
        f'v_lshl_add_u32 v{A+6}, v{A+1}, 4, v{A}', f'v_add_u32 v{A+6}, s{st+1}, v{A+6}']
    c+=[f'v_and_b32 v{A}, 15, {lane}', f'v_lshrrev_b32 v{A+1}, 5, {lane}', f'v_sub_u32 v{A}, v{A}, v{A+1}', f'v_lshlrev_b32 v{A}, 5, v{A}', f'v_lshl_add_u32 v{A}, v{A+2}, 4, v{A}',
        f's_lshl_b32 s{st+3}, s{st+2}, 8', f's_sub_u32 s{st+3}, s{st+1}, s{st+3}', f's_add_u32 s{st+3}, s{st+3}, {HB-192}', f'v_add_u32 v{A+7}, s{st+3}, v{A}']
    c+=['s_waitcnt vmcnt(0) lgkmcnt(0)','s_barrier']
    ACC=(A+8+3)//4*4
    def ra(rr,j): b=(rr%2)*64+j*4; return I(f'ds_read_b128 a[{b}:{b+3}], v{A+6} offset:{(59-8*j-rr)*64}',tag=tagR)
    def rb(rr,m): b=(rr%2)*64+32+m*4; return I(f'ds_read_b128 a[{b}:{b+3}], v{A+7} offset:{512*m+(3-rr)*64}',tag=tagR)
    for j in range(8): c+=[ra(0,j),rb(0,j)]
    pro=parse(c); pend=pro[-16:]
    mf=[];EV=[]
    for rr in range(4):
        g0=len(mf)
        for n in range(8):
            for j in range(n+1):
                a=(rr%2)*64+j*4; b=(rr%2)*64+32+(n-j)*4; d=ACC+4*n
                C='0' if (rr==0 and j==0) else f'v[{d}:{d+3}]'
                mf.append(f'{MF} v[{d}:{d+3}], a[{a}:{a+3}], a[{b}:{b+3}], {C}')
        if rr<3:
            for k in range(16): EV.append(F((ra if k%2==0 else rb)(rr+1,k//2),lo=g0+(8 if rr==0 else 0)+k*(1 if rr==0 else 2)))
    code,_=schedule(mf,[],EV,[],{})
    code,_=lgkm_waits(code,pend)
    tW=('W','cx',None,lds0,lds0+2*CHB,True); tR=('R','cx',None,lds0,lds0+2*CHB,True)
    e=['s_barrier', f's_lshl_b32 s{st+3}, s{sw}, 12', f's_add_u32 s{st+3}, s{st+3}, {lds0}', f'v_add_u32 v{A}, s{st+3}, v{l16}',
       f's_xor_b32 s{st+4}, s{sw}, 1', f's_lshl_b32 s{st+4}, s{st+4}, 12', f's_add_u32 s{st+4}, s{st+4}, {lds0}', f'v_add_u32 v{A+1}, s{st+4}, v{l16}',
       f's_cmp_eq_u32 s{st+2}, 1', f's_cselect_b64 vcc, -1, 0']
    X=ACC+32
    for k in range(16):
        e+=[f'v_cndmask_b32 v{X+k}, v{ACC+16+k}, v{ACC+k}, vcc', f'v_cndmask_b32 v{ACC+k}, v{ACC+k}, v{ACC+16+k}, vcc']
    for q in range(4): e.append(I(f'ds_write_b128 v{A}, v[{X+4*q}:{X+4*q+3}] offset:{q*1024}',tag=tW))
    e+=['s_waitcnt lgkmcnt(0)','s_barrier']
    for q in range(4): e.append(I(f'ds_read_b128 v[{X+4*q}:{X+4*q+3}], v{A+1} offset:{q*1024}',tag=tR))
    e+=[f'v_and_b32 v{A+2}, 15, {lane}', f'v_lshlrev_b32 v{A+2}, 5, v{A+2}', f'v_lshrrev_b32 v{A+3}, 4, {lane}', f'v_lshl_add_u32 v{A+2}, v{A+3}, 3, v{A+2}',
        f's_lshl_b32 s{st+3}, s{st}, 12', f's_lshl_b32 s{st+4}, s{st+2}, 11', f's_add_u32 s{st+3}, s{st+3}, s{st+4}', f's_add_u32 s{st+3}, s{st+3}, {WS_Y}']
    for q in range(4):
        e+=[f'v_add_f32 v{ACC+4*q+k}, v{ACC+4*q+k}, v{X+4*q+k}' for k in range(4)]
        e+=[f'v_cvt_pk_bf16_f32 v{ACC+4*q+k}, v{ACC+4*q+2*k}, v{ACC+4*q+2*k+1}' for k in range(2)]
        e+=[f'buffer_store_dwordx2 v[{ACC+4*q}:{ACC+4*q+1}], v{A+2}, s[{srd_ws}:{srd_ws+3}], s{st+3} offen offset:{q*512}{stfl}']
    e,_=lgkm_waits(parse(e))
    return fix_hazards(pro+code+e)

def step3(sw, lane, vb, sb, srd_ws, srd_out, ldfl=''):
    sQ=sb; sD=sb+4; sp=sb+8; sx=sb+12; sj=sb+13
    A=vb
    c=[f's_load_dwordx2 s[{sp}:{sp+1}], s[0:1], 0', f's_load_dwordx2 s[{sp+2}:{sp+3}], s[0:1], 40']
    c+=tile_ids(sx,sj,sw,A,lane)
    c+=[f'v_add_u32 v{A+3}, 4096, v{A}', f'v_lshlrev_b32 v{A+4}, 2, v{A+1}',
        f'v_mul_u32_u24 v{A+5}, {4*UR}, v{A+1}', f'v_sub_u32 v{A+6}, 2040, v{A+2}', f'v_lshl_add_u32 v{A+5}, v{A+6}, 1, v{A+5}',
        f'v_lshlrev_b32 v{A+6}, 13, v{A+1}', f'v_lshl_add_u32 v{A+6}, v{A+2}, 1, v{A+6}',
        f'v_lshlrev_b32 v{A+7}, 11, v{A+2}', f'v_lshl_add_u32 v{A+7}, v{A+1}, 2, v{A+7}']
    c+=['s_waitcnt lgkmcnt(0)']+srd(sQ,sp,2048*1024)+srd(sD,sp+2,1024)
    Y=A+8; U=Y+8; Q=U+8; Dd=Q+8; T=Dd+2
    L=[]
    for ch in range(2):
        L+=[f's_mov_b32 s{sj+1}, {WS_Y+ch*4096}', f's_mov_b32 s{sj+2}, {WS_U+ch*2*UR}',
            f'buffer_load_dwordx4 v[{Y+4*ch}:{Y+4*ch+3}], v{A+6}, s[{srd_ws}:{srd_ws+3}], s{sj+1} offen{ldfl}',
            f'buffer_load_dwordx4 v[{U+4*ch}:{U+4*ch+3}], v{A+5}, s[{srd_ws}:{srd_ws+3}], s{sj+2} offen{ldfl}']
    for t in range(8): L.append(f'buffer_load_dword v{Q+t}, v{A if t<4 else A+3}, s[{sQ}:{sQ+3}], 0 offen offset:{(t%4)*1024}')
    L.append(f'buffer_load_dword v{Dd}, v{A+4}, s[{sD}:{sD+3}], 0 offen')
    lo=lambda d,s: f'v_lshlrev_b32 v{d}, 16, v{s}'
    hi=lambda d,s: f'v_and_b32 v{d}, 0xffff0000, v{s}'
    comp=[hi(Dd+1,Dd),lo(Dd,Dd)]
    for t in range(8):
        for ch in range(2):
            tt=7-t
            comp+=[(lo if t%2==0 else hi)(T+ch,Y+4*ch+t//2), (lo if tt%2==0 else hi)(T+2,U+4*ch+tt//2), f'v_fmac_f32 v{T+ch}, v{T+2}, v{Dd+ch}',
                   (lo if ch==0 else hi)(T+2,Q+t), f'v_mul_f32 v{T+ch}, v{T+ch}, v{T+2}']
        comp+=[f'v_cvt_pk_bf16_f32 v{Q+t}, v{T}, v{T+1}', f's_mov_b32 s{sj+1}, {(t//2)*4096}',
               f'buffer_store_dword v{Q+t}, v{A+7}, s[{srd_out}:{srd_out+3}], s{sj+1} offen offset:{(t%2)*2048}']
    return c,L,comp
```

```python
import sys, importlib
from asm import I, parse
NAME='concat_heads__ssm_conv_h3__compressed_kv_cla__prompt'
def emit(kernels, path):
    ref=open('cdna_kernels/'+NAME+'.s.ref').read().split('\n')
    head=[l for l in ref if l.startswith(';') and '@launch' not in l and 'Override launch' not in l and 'grid=ceil' not in l]
    s='\n'.join(head)+'\n'
    for k in kernels:
        s+=f"; @launch kernel={k['name']} grid=({k['grid']},1,1) block=({k['block']},1,1) lds={k['lds']}\n"
    s+='.amdgcn_target "amdgcn-amd-amdhsa--gfx950"\n.text\n'
    seen=set()
    for k in kernels:
        if k['name'] in seen: continue
        seen.add(k['name'])
        s+=f".globl {k['name']}\n.p2align 8\n.type {k['name']},@function\n{k['name']}:\n"
        for x in k['code']:
            t=x.text.replace(', ',',')
            s+= (t if x.kind=='label' else t)+'\n'
        s+='  s_endpgm\n'
    s+='.p2align 8\n'+'  s_endpgm\n'*4
    s+='.section .rodata,"a"\n'
    seen=set()
    for k in kernels:
        if k['name'] in seen: continue
        seen.add(k['name'])
        s+=f""".p2align 6
.amdhsa_kernel {k['name']}
  .amdhsa_next_free_vgpr {k['vgpr']}
  .amdhsa_next_free_sgpr {k.get('sgpr',102)}
  .amdhsa_accum_offset {k['acc']}
  .amdhsa_group_segment_fixed_size 0
  .amdhsa_kernarg_size 120
  .amdhsa_user_sgpr_count 2
  .amdhsa_user_sgpr_kernarg_segment_ptr 1
  .amdhsa_system_sgpr_workgroup_id_x 1
  .amdhsa_float_denorm_mode_32 3
.end_amdhsa_kernel
"""
    open(path,'w').write(s)
    print('wrote',path,len(s),'bytes')
```

```python
from asm import I, parse, check
from sched import F, schedule, lgkm_waits, cycles

WS_K = 0
WS_V = 16<<20
MF = 'v_mfma_f32_16x16x32_bf16'

def srd(d, base, nbytes):
    return [f's_mov_b32 s{d}, s{base}', f's_and_b32 s{d+1}, s{base+1}, 0xffff', f's_mov_b32 s{d+2}, {nbytes}', f's_mov_b32 s{d+3}, 0x20000']

def code_warm(label_end, label_pc, vtmp, vdst, stmp, nbytes, tid='v0', nthreads=256):
    c=[f's_getpc_b64 s[{stmp}:{stmp+1}]', f'{label_pc}:', f'v_lshlrev_b32 {vtmp}, 7, {tid}']
    per = nthreads*128
    n = (nbytes+per-1)//per
    for i in range(n):
        c.append(f'v_min_u32 {vdst}, {label_end}-{label_pc}, {vtmp}')
        c.append(f'global_load_dword {vdst}, {vdst}, s[{stmp}:{stmp+1}]')
        if i<n-1:
            c.append(f'v_add_u32 {vtmp}, {per}, {vtmp}')
            vdst='v%d'%(int(vdst[1:])+1)
    return c, n

S_WAVE=20; S_H=21; S_MT=22; S_ROT=23
S_SOC=32
S_SOW=40
S_ST=48
S_MC=56; S_MW=57; S_T=58
V_LANE=1; V_A=2
V_W=4
V_DC=12; V_DW=13; V_DC0=14; V_DW0=15; V_ST=16; V_T=20

def acc(a,c):
    if c==0: return f'a[{4*a}:{4*a+3}]'
    b = 32 + ((c-1)*8+a)*4
    return f'v[{b}:{b+3}]'
def accn(a,c):
    return ('a',4*a) if c==0 else ('v',32+((c-1)*8+a)*4)
def afrag(t,a,s):
    b = 32 + (t%2)*64 + (a*2+s)*4
    return b
def wfrag(c,s):
    return 160 + (c%4)*8 + s*4

OPT=dict(ntc='',ntw='',st='',warm=True)
def dma_group(kind, t):
    ops=[]
    for n in range(8):
        if kind=='c':
            off = (t%2)*32768 + n*1024
            ops.append((f'buffer_load_dwordx4 v{V_DC}, s[8:11], s{S_SOC+n} offen {OPT["ntc"]} lds', f's_add_u32 m0, s{S_MC}, {off}'))
        else:
            off = 65536 + (t%3)*32768 + n*1024
            ops.append((f'buffer_load_dwordx4 v{V_DW}, s[12:15], s{S_SOW+n} offen {OPT["ntw"]} lds', f's_add_u32 m0, s{S_MC}, {off}'))
    return ops
def set_k(kind, t):
    c=[f's_add_u32 s{S_T}, s{S_ROT}, {t}', f's_and_b32 s{S_T}, s{S_T}, 7']
    if kind=='c': c+=[f's_lshl_b32 s{S_T}, s{S_T}, 7']; v=f'v_add_u32 v{V_DC}, s{S_T}, v{V_DC0}'
    else: c+=[f's_lshl_b32 s{S_T}, s{S_T}, 19']; v=f'v_add_u32 v{V_DW}, s{S_T}, v{V_DW0}'
    return c, v
def a_read(t,a,s):
    b=afrag(t,a,s)
    return f'ds_read_b128 a[{b}:{b+3}], v{V_A+s} offset:{(t%2)*32768+a*2048}'
def w_read(t,c,s,half):
    b=wfrag(c,s)+2*half
    wb=t%3
    v = V_W + (c%4) + (4 if wb==2 else 0)
    off = (wb%2)*32768 + (c>>2)*8192 + s*4096 + half*2048
    return f'ds_read_b64_tr_b16 a[{b}:{b+1}], v{v} offset:{off}'

def setup(rot=True):
    c=[]
    c+=['s_cmp_ge_u32 s2, 256','s_cbranch_scc1 K1_END',
        's_load_dwordx2 s[4:5], s[0:1], 56','s_load_dwordx4 s[24:27], s[0:1], 72','s_load_dwordx2 s[6:7], s[0:1], 112',
        f'v_lshrrev_b32 v{V_T}, 6, v0', f'v_and_b32 v{V_LANE}, 63, v0',
        f'v_readfirstlane_b32 s{S_WAVE}, v{V_T}',
        f's_and_b32 s{S_H}, s2, 7', f's_lshl_b32 s{S_H}, s{S_H}, 2', f's_bfe_u32 s{S_T}, s2, 0x20003', f's_add_u32 s{S_H}, s{S_H}, s{S_T}',
        f's_lshr_b32 s{S_MT}, s2, 5']
    if rot==8: c+=[f's_lshl_b32 s{S_T}, s{S_T}, 1', f's_add_u32 s{S_ROT}, s{S_MT}, s{S_T}']
    elif rot==4: c+=[f's_add_u32 s{S_ROT}, s{S_MT}, s{S_T}', f's_lshl_b32 s{S_ROT}, s{S_ROT}, 1']
    elif rot==2: c+=[f's_add_u32 s{S_ROT}, s{S_MT}, s{S_T}', f's_lshl_b32 s{S_ROT}, s{S_ROT}, 2']
    else: c+=[f's_mov_b32 s{S_ROT}, 0']
    for n in range(8):
        c.append(f's_mov_b32 s{S_SOC+n}, {n*8192}')
        c.append(f's_mov_b32 s{S_SOW+n}, {(32*(n>>2)+16*(n&1)+4*((n>>1)&1))*8192}')
    c+=[f's_lshl_b32 s{S_MC}, s{S_WAVE}, 13']
    L=f'v{V_LANE}'; T=V_T
    c+=[f'v_lshrrev_b32 v{T}, 3, {L}', f'v_and_b32 v{T+1}, 6, v{T}', f'v_xor_b32 v{T+1}, v{T+1}, {L}', f'v_and_b32 v{T+1}, 7, v{T+1}',
        f'v_lshlrev_b32 v{T+1}, 4, v{T+1}', f'v_lshl_add_u32 v{V_DC0}, v{T}, 10, v{T+1}',
        f's_lshl_b32 s{S_T}, s{S_MT}, 18', f's_lshl_b32 s{S_T+1}, s{S_WAVE}, 16', f's_add_u32 s{S_T}, s{S_T}, s{S_T+1}',
        f'v_add_u32 v{V_DC0}, s{S_T}, v{V_DC0}']
    c+=[f'v_lshrrev_b32 v{T+1}, 2, v{T}', f'v_lshlrev_b32 v{T+1}, 3, v{T+1}', f'v_and_b32 v{T+2}, 3, v{T}', f'v_add_u32 v{T+1}, v{T+1}, v{T+2}',
        f'v_lshlrev_b32 v{V_DW0}, 13, v{T+1}',
        f'v_bfe_u32 v{T+1}, {L}, 1, 2', f'v_lshrrev_b32 v{T+2}, 4, {L}', f'v_xor_b32 v{T+1}, v{T+1}, v{T+2}',
        f'v_lshl_add_u32 v{V_DW0}, v{T+1}, 5, v{V_DW0}', f'v_and_b32 v{T+1}, 1, {L}', f'v_lshl_add_u32 v{V_DW0}, v{T+1}, 4, v{V_DW0}',
        f's_lshl_b32 s{S_T}, s{S_H}, 8', f's_and_b32 s{S_T+1}, s{S_WAVE}, 1', f's_lshl_b32 s{S_T+1}, s{S_T+1}, 7', f's_add_u32 s{S_T}, s{S_T}, s{S_T+1}',
        f'v_add_u32 v{V_DW0}, s{S_T}, v{V_DW0}']
    if OPT.get('conv'):
        import conv
        a,l,cp=conv.step1(S_WAVE,L,32,64,OPT['st'])
        c+=a+l+['s_waitcnt vmcnt(0)']+cp+['s_waitcnt vmcnt(0)']
    c+=['s_waitcnt lgkmcnt(0)']
    c+=srd(8,4,2048*512*2)
    c+=[f's_cmp_lt_u32 s{S_WAVE}, 2', 's_cselect_b32 s12, s24, s26', 's_cselect_b32 s13, s25, s27', 's_and_b32 s13, s13, 0xffff', f's_mov_b32 s14, {512*4096*2}', 's_mov_b32 s15, 0x20000']
    c+=srd(16,6,32<<20)
    for kind,t in (('c',0),('w',0),('c',1),('w',1)):
        s,v=set_k(kind,t); c+=s+[v]
        for d,m in dma_group(kind,t): c+=[m,'s_nop 0',d]
    if OPT['warm']:
        w,nw=code_warm('K1_END','K1_PC',f'v{T}',f'v{T+8}',60,32768)
        c+=w
        assert nw==1
    c+=[f'v_and_b32 v{T}, 15, {L}', f'v_lshrrev_b32 v{T+1}, 4, {L}', f'v_and_b32 v{T+2}, 6, v{T}', f'v_xor_b32 v{T+1}, v{T+1}, v{T+2}',
        f'v_lshlrev_b32 v{T+1}, 4, v{T+1}', f'v_lshl_add_u32 v{V_A}, v{T}, 7, v{T+1}',
        f's_lshr_b32 s{S_T}, s{S_WAVE}, 1', f's_lshl_b32 s{S_T}, s{S_T}, 14', f'v_add_u32 v{V_A}, s{S_T}, v{V_A}', f'v_xor_b32 v{V_A+1}, 64, v{V_A}']
    c+=[f'v_lshrrev_b32 v{T}, 2, {L}', f'v_lshlrev_b32 v{T}, 7, v{T}', f'v_and_b32 v{T+1}, 3, {L}', f'v_lshl_add_u32 v{T}, v{T+1}, 3, v{T}',
        f'v_bfe_u32 v{T+1}, {L}, 3, 2', f'v_lshl_add_u32 v{T}, v{T+1}, 5, v{T}',
        f's_and_b32 s{S_T}, s{S_WAVE}, 1', f's_lshl_b32 s{S_T}, s{S_T}, 14', f's_add_u32 s{S_T}, s{S_T}, 65536', f'v_add_u32 v{T}, s{S_T}, v{T}']
    for c4 in range(4):
        c+=[f'v_xor_b32 v{V_W+c4}, {c4*32}, v{T}', f'v_add_u32 v{V_W+4+c4}, 65536, v{V_W+c4}']
    c+=[f'v_lshlrev_b32 v{V_ST}, 4, {L}',
        f's_lshl_b32 s{S_T}, s{S_H}, 19', f's_lshl_b32 s{S_T+1}, s{S_MT}, 16', f's_add_u32 s{S_T}, s{S_T}, s{S_T+1}',
        f's_lshr_b32 s{S_T+1}, s{S_WAVE}, 1', f's_lshl_b32 s{S_T+1}, s{S_T+1}, 15', f's_add_u32 s{S_T}, s{S_T}, s{S_T+1}',
        f's_and_b32 s{S_T+1}, s{S_WAVE}, 1', f's_lshl_b32 s{S_T+1}, s{S_T+1}, 24', f's_add_u32 s{S_ST}, s{S_T}, s{S_T+1}']
    for n in range(1,8): c.append(f's_add_u32 s{S_ST+n}, s{S_ST}, {n*4096}')
    c+=[f's_waitcnt vmcnt({24+(1 if OPT["warm"] else 0)})','s_barrier']
    for a in range(8):
        for s in range(2): c.append(a_read(0,a,s))
        if a==5: c.append('s_waitcnt lgkmcnt(4)')
    c+=[f's_waitcnt vmcnt({8+(1 if OPT["warm"] else 0)}) lgkmcnt(0)','s_barrier']
    for s in range(2):
        for hf in range(2): c.append(w_read(0,0,s,hf))
    return c

def main(mat, stflags=''):
    mf=[]; D=[]; S=[]; V=[]; pre={}; EV=[]
    for t in range(8):
        g0=t*128
        for c in range(8):
            for a in range(8):
                for s in range(2):
                    A=afrag(t,a,s); W=wfrag(c,s)
                    x,y=(f'a[{W}:{W+3}]',f'a[{A}:{A+3}]') if mat==0 else (f'a[{A}:{A+3}]',f'a[{W}:{W+3}]')
                    C = '0' if (t==0 and s==0) else acc(a,c)
                    mf.append(f'{MF} {acc(a,c)}, {x}, {y}, {C}')
        ev=[]
        for c in range(8):
            tt,cc=(t,c+1) if c<7 else (t+1,0)
            if tt<8:
                k=0
                for s in range(2):
                    for hf in range(2):
                        ev.append((g0+c*16+k+(1 if c==7 else 0), F(w_read(tt,cc,s,hf), lo=g0+c*16+k+(1 if c==7 else 0)))); k+=1
        if t<6:
            grp=dma_group('c',t+2)+dma_group('w',t+2)
            sc,vc=set_k('c',t+2); sw,vw=set_k('w',t+2)
            if t==0: pos=[5,9,13,21,25,29,37,45]+[53+8*k for k in range(8)]
            else: pos=[g0-10,g0-3]+[g0+5+8*k for k in range(14)]
            p0=pos[0]
            for k,x in enumerate(sc): S.append(F(x,lo=p0-5,hi=p0-3))
            V.append(F(vc,lo=p0-2,hi=p0-2))
            S.append(F(grp[0][1],lo=p0-1,hi=p0-1))
            p8=pos[8]
            for k,x in enumerate(sw): S.append(F(x,lo=p8-7,hi=p8-4))
            V.append(F(vw,lo=p8-3,hi=p8-3))
            for n,(d,m) in enumerate(grp):
                ev.append((pos[n], F(d,lo=pos[n],post=[grp[n+1][1]] if n<15 else [])))
        if t<7:
            k=0
            for a in range(8):
                for s in range(2):
                    g = g0 + (k//3)*16 + 7 + (k%3)*2 + (1 if (t==0 and k<6) else 0)
                    ev.append((g,F(a_read(t+1,a,s),lo=g))); k+=1
            vm = 8 if t<6 else 0
            pre[g0+112]=[f's_waitcnt vmcnt({vm}) lgkmcnt(0)','s_barrier']
        else:
            pairs=[]
            if mat==0:
                for u in range(4):
                    for a in range(8):
                        pairs.append(((a,2*u),(a,2*u+1), g0+(2*u+1)*16+a*2+1, S_ST+a, u*1024))
            else:
                for c in range(8):
                    for u in range(4):
                        pairs.append(((2*u,c),(2*u+1,c), g0+c*16+(2*u+1)*2+1, S_ST+(u>>1)*4+(c>>1), (c&1)*2048+(u&1)*1024))
            tmp=0
            for (t0,t1,gd,so,imm) in pairs:
                lo=gd+4
                r=[]
                for tl in (t0,t1):
                    k,b=accn(*tl)
                    if k=='a':
                        tb=V_T+4*(tmp%3); tmp+=1
                        for j in range(4): V.append(F(f'v_accvgpr_read_b32 v{tb+j}, a{b+j}',lo=lo))
                        b=tb
                    r.append(b)
                d=r[1] if accn(*t1)[0]=='v' else r[0]
                if d==r[0]:
                    seq=[(0,r[0]),(1,r[0]+2),(2,r[1]),(3,r[1]+2)]
                else:
                    seq=[(3,r[1]+2),(2,r[1]),(1,r[0]+2),(0,r[0])]
                for j,src in seq: V.append(F(f'v_cvt_pk_bf16_f32 v{d+j}, v{src}, v{src+1}',lo=lo))
                V.append(F(f'buffer_store_dwordx4 v[{d}:{d+3}], v{V_ST}, s[16:19], s{so} offen offset:{imm}{stflags}',lo=lo))
        EV+=ev
    EV.sort(key=lambda e:e[0]); D=[e[1] for e in EV]
    S.sort(key=lambda f:f.lo)
    n=len(mf)
    tail=[f for f in V if f.lo>=n-1]
    V=[f for f in V if f.lo<n-1]
    code,over=schedule(mf,V,D,S,pre)
    code+=parse(['s_nop 7'])+[f.i for f in tail]
    return code,over

def build(rot=True, diag=False):
    su=parse(setup(rot))
    pend=[x for x in su[-4:]]
    assert all(x.kind=='ds' for x in pend)
    out=list(su)
    if diag:
        import stamp
        k=[i for i,x in enumerate(out) if x.op=='s_load_dwordx2'][0]
        out[k:k]=parse(['s_memrealtime s[64:65]','s_memtime s[66:67]'])
        k=[i for i,x in enumerate(out) if x.text.startswith('s_waitcnt vmcnt(2')][0]
        out[k:k]=parse(['s_memtime s[68:69]','s_waitcnt lgkmcnt(0)'])
        out,n0=stamp.auto_stamp(out,64,3,18)
    out+=parse([f's_and_b32 s{S_T}, s{S_WAVE}, 1', f's_cmp_eq_u32 s{S_T}, 1','s_cbranch_scc1 K1_V'])
    bodies=[]
    for mat in (0,1):
        code,over=main(mat,OPT['st'])
        code,_=lgkm_waits(code,pend)
        if diag:
            code,n=stamp.auto_stamp(code,64,n0,18)
            code+=parse([f's_memtime s[{64+2*n}:{65+2*n}]','s_waitcnt vmcnt(0)',f's_memtime s[{66+2*n}:{67+2*n}]',f's_memrealtime s[{68+2*n}:{69+2*n}]'])+stamp.dump(64,n+3,S_WAVE,6)
            print('stamps',n+3)
        bodies.append(code)
        pr=check(su+code,f'k1 mat{mat}')
        print(f'k1 mat{mat}: insts {len(code)} overflow {over} est cycles {cycles(code)} problems {len(pr)}')
    out+=bodies[0]+parse(['s_endpgm','K1_V:'])+bodies[1]+parse(['K1_END:'])
    return out
if __name__=='__main__':
    c=build()
```

```python
from asm import I, parse, check, fix_hazards
from sched import F, schedule, lgkm_waits, cycles
from attn import *
import attn
from k1 import srd, code_warm
WS_K=0; WS_V=16<<20; WS_C=32<<20
CSCALE=0x3e0293ee
import struct, math
CSCALE=struct.unpack('<I',struct.pack('<f',math.log2(math.e)/math.sqrt(128)))[0]
S_SOX=32
S_SOW=40
S_MX=44; S_MW=45; S_C=46
S_RB=80
V_XA=8
V_WA=12
V_DX=16; V_DW=17
XB=[0,32768,65536]; WB=[131072,147456,98304]
A_X=160; A_W=224
OPT=dict(ntw='',ntx='',warm=True,stfl='')
def qacc(a,c): return 128+(c*4+a)*4
def q_dma(kind,t):
    ops=[]
    if kind=='x':
        for n in range(8):
            ops.append((I(f'buffer_load_dwordx4 v{V_DX}, s[8:11], s{S_SOX+n} offen {OPT["ntx"]} lds',tag=('W','x',t,XB[t%3],XB[t%3]+32768,False)), f's_add_u32 m0, s{S_MX}, {XB[t%3]+n*1024}'))
    else:
        for n in range(4):
            ops.append((I(f'buffer_load_dwordx4 v{V_DW}, s[12:15], s{S_SOW+n} offen {OPT["ntw"]} lds',tag=('W','wq',t,WB[t%3],WB[t%3]+16384,True)), f's_add_u32 m0, s{S_MW}, {WB[t%3]+n*1024}'))
    return ops
def q_bump(kind): return f'v_add_u32 v{V_DX}, 128, v{V_DX}' if kind=='x' else f'v_add_u32 v{V_DW}, {64*8192}, v{V_DW}'
def x_read(t,a,s):
    b=A_X+(t%2)*32+(a*2+s)*4; base=XB[t%3]
    return I(f'ds_read_b128 a[{b}:{b+3}], v{V_XA+s+(2 if base>=65536 else 0)} offset:{base%65536+a*2048}',tag=('R','x',t,base,base+32768,False))
def w_read(t,c,s,hf):
    b=A_W+(c%4)*8+s*4+2*hf
    return I(f'ds_read_b64_tr_b16 a[{b}:{b+1}], v{V_WA+c%4} offset:{WB[t%3]-98304+(c>>2)*8192+s*4096+hf*2048}',tag=('R','wq',t,WB[t%3],WB[t%3]+16384,True))

def ids():
    T=S_T
    c=[f'v_lshrrev_b32 v{V_T}, 6, v0', f'v_and_b32 v7, 63, v0', f'v_readfirstlane_b32 s{S_WAVE}, v{V_T}',
       f's_and_b32 s{S_H}, s2, 7', f's_lshl_b32 s{S_H}, s{S_H}, 2', f's_bfe_u32 s{T}, s2, 0x20003', f's_add_u32 s{S_H}, s{S_H}, s{T}',
       f's_lshr_b32 s{S_I}, s2, 5', f's_lshl_b32 s{S_W4K}, s{S_WAVE}, 12',
       f'v_lshlrev_b32 v{V_L16}, 4, v7']
    c+=[f's_sub_u32 s{T}, 15, s{S_I}', f's_lshl_b32 s{T}, s{T}, 3', f's_lshr_b32 s{T+1}, s{S_WAVE}, 1', f's_add_u32 s{T}, s{T}, s{T+1}',
        f's_and_b32 s{T+1}, s{S_WAVE}, 1', f's_lshl_b32 s{T+1}, s{T+1}, 1',
        f's_add_u32 s{S_RB}, s{T}, s{T+1}', f's_add_u32 s{S_RB+1}, s{T}, 6', f's_sub_u32 s{S_RB+1}, s{S_RB+1}, s{T+1}',
        f's_add_u32 s{S_RB+4}, s{T}, 2', f's_sub_u32 s{S_RB+4}, s{S_RB+4}, s{T+1}', f's_add_u32 s{S_RB+5}, s{T}, 4', f's_add_u32 s{S_RB+5}, s{S_RB+5}, s{T+1}',
        f's_lshl_b32 s{T}, s{S_I}, 3', f's_add_u32 s{S_RB+2}, s{T}, s{S_WAVE}', f's_add_u32 s{S_RB+3}, s{S_RB+2}, 4']
    return c

def q_setup():
    T=V_T+10; L='v7'; S=S_T
    c=[]
    for n in range(8):
        c+=[f's_lshl_b32 s{S_SOX+n}, s{S_RB+(n>>1)}, 14']
        if n&1: c+=[f's_add_u32 s{S_SOX+n}, s{S_SOX+n}, 8192']
    c+=[f's_lshr_b32 s{S}, s{S_WAVE}, 1', f's_lshl_b32 s{S}, s{S}, 18']
    for n in range(4): c+=[f's_add_u32 s{S_SOW+n}, s{S}, {(16*(n&1)+4*(n>>1))*8192}']
    c+=[f's_lshl_b32 s{S_MX}, s{S_WAVE}, 13',
        f's_and_b32 s{S}, s{S_WAVE}, 1', f's_lshl_b32 s{S}, s{S}, 13', f's_lshr_b32 s{S+1}, s{S_WAVE}, 1', f's_lshl_b32 s{S+1}, s{S+1}, 12', f's_add_u32 s{S_MW}, s{S}, s{S+1}',
        f's_mov_b32 s{S_C}, {CSCALE:#x}']
    c+=[f'v_lshrrev_b32 v{T}, 3, {L}', f'v_and_b32 v{T+1}, 6, v{T}', f'v_xor_b32 v{T+1}, v{T+1}, {L}', f'v_and_b32 v{T+1}, 7, v{T+1}',
        f'v_lshlrev_b32 v{T+1}, 4, v{T+1}', f'v_lshl_add_u32 v{V_DX}, v{T}, 10, v{T+1}']
    c+=[f'v_lshrrev_b32 v{T+1}, 2, v{T}', f'v_lshlrev_b32 v{T+1}, 3, v{T+1}', f'v_and_b32 v{T+2}, 3, v{T}', f'v_add_u32 v{T+1}, v{T+1}, v{T+2}',
        f'v_lshlrev_b32 v{V_DW}, 13, v{T+1}',
        f'v_bfe_u32 v{T+1}, {L}, 1, 2', f'v_lshrrev_b32 v{T+2}, 4, {L}', f'v_xor_b32 v{T+1}, v{T+1}, v{T+2}',
        f'v_lshl_add_u32 v{V_DW}, v{T+1}, 5, v{V_DW}', f'v_and_b32 v{T+1}, 1, {L}', f'v_lshl_add_u32 v{V_DW}, v{T+1}, 4, v{V_DW}',
        f's_lshl_b32 s{S}, s{S_H}, 8', f's_and_b32 s{S+1}, s{S_WAVE}, 1', f's_lshl_b32 s{S+1}, s{S+1}, 7', f's_add_u32 s{S}, s{S}, s{S+1}',
        f'v_add_u32 v{V_DW}, s{S}, v{V_DW}']
    return c
def q_setup2():
    T=V_T+10; L='v7'
    c=[f'v_and_b32 v{T}, 15, {L}', f'v_lshrrev_b32 v{T+1}, 4, {L}', f'v_and_b32 v{T+2}, 6, v{T}', f'v_xor_b32 v{T+1}, v{T+1}, v{T+2}',
       f'v_lshlrev_b32 v{T+1}, 4, v{T+1}', f'v_lshl_add_u32 v{V_XA}, v{T}, 7, v{T+1}', f'v_add_u32 v{V_XA}, s{S_MX}, v{V_XA}',
       f'v_xor_b32 v{V_XA+1}, 64, v{V_XA}', f'v_add_u32 v{V_XA+2}, 65536, v{V_XA}', f'v_add_u32 v{V_XA+3}, 65536, v{V_XA+1}']
    c+=[f'v_lshrrev_b32 v{T}, 2, {L}', f'v_lshlrev_b32 v{T}, 7, v{T}', f'v_and_b32 v{T+1}, 3, {L}', f'v_lshl_add_u32 v{T}, v{T+1}, 3, v{T}',
        f'v_bfe_u32 v{T+1}, {L}, 3, 2', f'v_lshl_add_u32 v{T}, v{T+1}, 5, v{T}', f'v_add_u32 v{T}, 98304, v{T}']
    for c4 in range(4): c.append(f'v_xor_b32 v{V_WA+c4}, {c4*32}, v{T}')
    c+=[f'v_mov_b32 v{V_KA}, v{V_L16}', f's_and_b32 s{S_T}, s{S_WAVE}, 1', f's_lshl_b32 s{S_T}, s{S_T}, 14', f'v_add_u32 v{V_KA+1}, s{S_T}, v{V_L16}',
        f'v_add_u32 v{V_VA}, 65536, v{V_KA}', f'v_add_u32 v{V_VA+1}, 65536, v{V_KA+1}', f'v_mov_b32 v{V_NINF}, 0xff800000']
    return c
def kv_offsets():
    T=S_T
    return [f's_lshl_b32 s{T}, s{S_H}, 19', f's_add_u32 s{T}, s{T}, s{S_W4K}', f's_sub_u32 s{S_KO}, s{T}, 16384', f's_add_u32 s{S_VO}, s{S_KO}, {WS_V}']
def flat(ops):
    c=[]
    for pre,t in ops: c+=list(pre)+[t]
    return c
QX=98304

def qproj():
    c=[]
    for kind,t in (('x',0),('w',0),('x',1),('w',1),('x',2)):
        if t>0: c.append(q_bump(kind))
        for d,m in q_dma(kind,t): c+=[m,'s_nop 0',d]
    nw=0
    if OPT['warm']:
        w,nw=code_warm('K2_END','K2_PC','v24','v25',S_T,65536); c+=w
    c+=q_setup2()+kv_offsets()
    c+=[f's_lshl_b32 s{S_T}, s{S_WAVE}, 13', f's_add_u32 s{S_T}, s{S_T}, {QX}', f'v_add_u32 v18, s{S_T}, v{V_L16}', f'v_xor_b32 v19, 8192, v18']
    c+=[f's_waitcnt vmcnt({24+nw})']
    for a in range(4):
        for s in range(2): c.append(x_read(0,a,s))
    c+=[f's_waitcnt vmcnt({12+nw}) lgkmcnt(0)','s_barrier']
    for cc in range(2):
        for s in range(2):
            for hf in range(2): c.append(w_read(0,cc,s,hf))
    pro=parse(c); pend=pro[-8:]
    mf=[];V=[];S=[];EV=[];pre={}
    for t in range(8):
        g0=t*64
        for cc in range(8):
            for a in range(4):
                for s in range(2):
                    W=A_W+(cc%4)*8+s*4; X=A_X+(t%2)*32+(a*2+s)*4; A=qacc(a,cc)
                    C='0' if (t==0 and s==0) else f'v[{A}:{A+3}]'
                    mf.append(f'{MF} v[{A}:{A+3}], a[{W}:{W+3}], a[{X}:{X+3}], {C}')
        for cc in range(8):
            tt,c2=(t,cc+2) if cc<6 else (t+1,cc-6)
            if tt<8:
                for k,(s,hf) in enumerate(((0,0),(0,1),(1,0),(1,1))):
                    g=g0+cc*8+k+(2 if cc==6 else 0)
                    EV.append((g,F(w_read(tt,c2,s,hf),lo=g)))
        if t<7:
            for k in range(8):
                g=g0+(k//2)*8+4+(k%2)*2
                EV.append((g,F(x_read(t+1,k//2,k%2),lo=g)))
            vm = 12 if t<5 else (4+8 if t==5 else 8+4)
            pre[g0+48]=[f's_waitcnt vmcnt({vm}) lgkmcnt(0)']; pre[g0+49]=['s_barrier']
        grp=[]
        if t+2<8: grp+=[('w',)+o for o in q_dma('w',t+2)]
        if t+3<8: grp+=[('x',)+o for o in q_dma('x',t+3)]
        pos=[g0-9,g0-3,g0-1]+[g0+5,g0+7,g0+13,g0+15,g0+21,g0+29,g0+36,g0+38,g0+44] if t>0 else [5,7,13,15,21,23,29,31,36,38,44,46]
        prev=None; seen=set()
        for (kind,d,m),g in zip(grp,pos):
            if kind not in seen:
                seen.add(kind); V.append(F(q_bump(kind),lo=max(g-3,0) if prev is None else prevg,hi=g-1))
            if prev is None: S.append(F(m,lo=g-2,hi=g-1))
            else: prev.post=[I(m)]
            prev=F(d,lo=g); prevg=g; EV.append((g,prev))
        if t in (6,7):
            ops = (dma_ops('k',0,1)+dma_ops('v',0,1)) if t==6 else dma_ops('k',1,1)
            prev=None
            for (prs,txt),g in zip(ops,pos):
                if prs:
                    if prev is None:
                        for j,x in enumerate(prs): S.append(F(x,lo=g-3+j,hi=g-2+j))
                    else: prev.post=[I(x) for x in prs]
                prev=F(txt,lo=g); EV.append((g,prev))
    pre[5*64+48]=['s_waitcnt vmcnt(4) lgkmcnt(0)']
    pre[6*64+48]=['s_waitcnt vmcnt(8) lgkmcnt(0)']
    for j in range(64): V.append(F(f'v_accvgpr_write_b32 a{A_OP+j}, 0',lo=5*64+j,hi=7*64))
    V.sort(key=lambda f:f.lo)
    g0=7*64; tail=[]
    for u in range(4):
        for a in range(4):
            lo=g0+(2*u+1)*8+a*2+1+5
            r0=qacc(a,2*u); r1=qacc(a,2*u+1)
            ops=[f'v_mul_f32 v{r+j}, s{S_C}, v{r+j}' for r in (r0,r1) for j in range(4)]
            ops+=[f'v_cvt_pk_bf16_f32 v{r0+j}, v{src}, v{src+1}' for j,src in enumerate((r0,r0+2,r1,r1+2))]
            ops+=[f'v_accvgpr_write_b32 a{qreg(a,u)+j}, v{r0+j}' for j in range(4)]
            if a<2: ops.append(I(f'ds_write_b128 v18, v[{r0}:{r0+3}] offset:{(a*4+u)*1024}',tag=('W','qx',None,QX,QX+32768,True)))
            for o in ops: (V if lo<len(mf)-1 else tail).append(F(o,lo=lo))
    EV.sort(key=lambda e:e[0]); S.sort(key=lambda f:f.lo)
    code,over=schedule(mf,V,[e[1] for e in EV],S,pre)
    code+=parse(['s_nop 7'])+[f.i for f in tail]
    code,_=lgkm_waits(code,pend)
    print('qproj est cycles',cycles(code),'overflow',over)
    return pro,code

def xlane(reg,tmp,op):
    return [f'v_mov_b32 v{tmp}, v{reg}','s_nop 1',f'v_permlane32_swap_b32 v{tmp}, v{reg}',f'{op} v{reg}, v{reg}, v{tmp}',
            f'v_mov_b32 v{tmp}, v{reg}','s_nop 1',f'v_permlane16_swap_b32 v{tmp}, v{reg}',f'{op} v{reg}, v{reg}, v{tmp}']
def xlane_multi(regs,tmps,op):
    c=[]
    for sw in ('v_permlane32_swap_b32','v_permlane16_swap_b32'):
        c+=[f'v_mov_b32 v{t}, v{r}' for r,t in zip(regs,tmps)]
        if len(regs)<3: c+=['s_nop 1']
        c+=[f'{sw} v{t}, v{r}' for r,t in zip(regs,tmps)]
        c+=[f'{op} v{r}, v{r}, v{t}' for r,t in zip(regs,tmps)]
    return c
def masks():
    T=V_T
    c=[f'v_and_b32 v{T}, 15, v7', f'v_lshrrev_b32 v{T+1}, 4, v7', f'v_lshlrev_b32 v{T+1}, 2, v{T+1}', f'v_sub_u32 v{T}, v{T}, v{T+1}',
       f's_lshl_b32 s{S_T}, s{S_WAVE}, 4', f'v_add_u32 v{T+1}, s{S_T}, v{T}',
       f's_lshr_b32 s{S_T}, s{S_WAVE}, 1', f's_lshl_b32 s{S_T}, s{S_T}, 4', f'v_add_u32 v{T+2}, s{S_T}, v{T}']
    for kt in range(4):
        for r in range(4):
            sm=S_MK+(kt*4+r)*2; c.append(f'v_cmp_le_i32 s[{sm}:{sm+1}], {16*kt+r}, v{T+1}')
    for hf in range(2):
        for r in range(4):
            sm=S_ML+(hf*4+r)*2; c.append(f'v_cmp_le_i32 s[{sm}:{sm+1}], {16*hf+r}, v{T+2}')
    return c
P1=lambda par,kind='plain',first=(): Step(1,par,kind,first=first)
P2=lambda par,kind='plain',e=None: Step(2,par,kind,e)
def k0reads():
    st=P1(0)
    return [I(kread(st,0,0,ds,0),tag=('R','k',0,0,32768,True)) for ds in range(4)]
def after_q():
    c=['s_waitcnt vmcnt(8) lgkmcnt(0)','s_barrier']
    c+=k0reads()
    for a in range(2):
        for u in range(4): c.append(I(f'ds_read_b128 {rng("a",qreg(4+a,u))}, v19 offset:{(a*4+u)*1024}',tag=('R','qx',None,QX,QX+32768,True)))
    c+=masks()
    for b in range(6):
        for ds in range(4):
            C='0' if ds==0 else rng('v',V_NM+b*4)
            c.append(f'{MF} {rng("v",V_NM+b*4)}, {rng("a",A_K+ds*4)}, {rng("a",qreg(b,ds))}, {C}')
    c+=[f's_cmp_eq_u32 s{S_RB+2}, 0']
    for r in range(4):
        c.append(f's_cselect_b64 s[{S_T+0}:{S_T+1}], s[{S_MK+2*r}:{S_MK+2*r+1}], -1')
        c.append(f'v_cndmask_b32 v{V_NM+8+r}, v{V_NINF}, v{V_NM+8+r}, s[{S_T}:{S_T+1}]')
    for b in range(6):
        x=V_NM+b*4
        c+=[f'v_max_f32 v{x}, v{x}, v{x+1}', f'v_max3_f32 v{x}, v{x}, v{x+2}, v{x+3}']
    c+=xlane_multi([V_NM+b*4 for b in range(6)],[V_NM+b*4+1 for b in range(6)],'v_max_f32')
    return c
def set_negm():
    c=[]
    for b in range(6):
        x=V_NM+b*4
        c+=[f'v_sub_f32 v{x+r}, 0, v{x}' for r in (3,2,1,0)]
    c+=[f'v_mov_b32 v{V_L+b}, 0' for b in range(6)]
    return c
OX=0
LX=131072
def short_epi():
    T=V_T
    c=xlane_multi([V_L+2,V_L+3],[T,T+1],'v_add_f32')
    c+=[f'v_rcp_f32 v{T}, v{V_L+2}', f'v_rcp_f32 v{T+1}, v{V_L+3}']
    c+=store_ctx(2,T)+store_ctx(3,T+1)
    return c
S_CO=86
def store_ctx(b,rinv):
    c=[]
    base=(V_OO+b*32) if b<2 else (V_OS+(b-2)*32)
    for u in range(4):
        r=base+u*8
        c+=[f'v_mul_f32 v{r+j}, v{rinv}, v{r+j}' for j in range(8)]
        c+=[f'v_cvt_pk_bf16_f32 v{r+j}, v{r+2*j}, v{r+2*j+1}' for j in range(4)]
        c+=[f'buffer_store_dwordx4 v[{r}:{r+3}], v{V_L16}, s[{SRD_WS}:{SRD_WS+3}], s{S_CO+b} offen offset:{u*1024}{OPT["stfl"]}']
    return c
def tail_extras(ulast):
    def extraV(V,iters,n):
        lo=0
        for it in iters:
            for (b,dt),g in it['o_last'].items():
                if b in (2,3): lo=max(lo,g+5)
        lo=max(lo,iters[-1]['g0'])
        return V+[F(x,lo=min(lo,n-1)) for x in short_epi() if not x.startswith('s_nop')]
    def extraD(iters,n):
        it=iters[-1]; ev=[]
        for b in (4,5):
            for dt in range(8):
                g=it['o_last'].get((b,dt),it['g0']-4)+5
                x=A_OP+((b-4)*8+dt)*4
                f=F(I(f'ds_write_b128 v{V_T+4}, a[{x}:{x+3}] offset:{((b-4)*8+dt)*1024}',tag=('W','ox',None,OX,OX+65536,True)),lo=min(g,n-1),hi=g+2)
                f.late = g>n-1
                ev.append((g,f))
        tail_extras.late=[f.i for g,f in sorted(ev,key=lambda e:e[0]) if f.late]
        return [(g,f) for g,f in ev if not f.late]
    return extraV,extraD
def final():
    T=V_T
    c=['s_nop 3']+tail_extras.late
    c+=[f'v_max3_f32 v{T+2}, v{V_L}, v{V_L+1}, v{V_L+2}', f'v_max3_f32 v{T+3}, v{V_L+3}, v{V_L+4}, v{V_L+5}',
        f'v_add_f32 v{T+2}, v{T+2}, v{T+3}',
        I(f'ds_write_b64 v{T+6}, v[{V_L+4}:{V_L+5}]',tag=('W','lx',None,LX,LX+8192,True)),
        f'v_cmp_nle_f32 vcc, v{T+2}, v{T+7}',
        f'v_mov_b32 v{T+3}, s{S_WAVE}', f'v_lshlrev_b32 v{T+3}, 2, v{T+3}',
        f's_cmp_lg_u64 vcc, 0', f's_cselect_b32 s{S_T}, 1, 0', f'v_mov_b32 v{T+2}, s{S_T}',
        f'v_add_u32 v{T+3}, {LX+4096}, v{T+3}',
        I(f'ds_write_b32 v{T+3}, v{T+2}',tag=('W','lx',None,LX,LX+8192,True)),
        's_waitcnt lgkmcnt(0)','s_barrier']
    c+=[f'v_xor_b32 v{T+6}, 512, v{T+6}', f'v_mov_b32 v{T+3}, {LX+4096}',
        I(f'ds_read_b64 v[{V_L+4}:{V_L+5}], v{T+6}',tag=('R','lx',None,LX,LX+8192,True)),
        I(f'ds_read_b128 v[{V_S}:{V_S+3}], v{T+3}',tag=('R','lx',None,LX,LX+8192,True))]
    for j in range(16):
        c.append(I(f'ds_read_b128 v[{V_P+4*j}:{V_P+4*j+3}], v{T+5} offset:{j*1024}',tag=('R','ox',None,OX,OX+65536,True)))
        if j==11: c+=['s_waitcnt lgkmcnt(12)', f'v_or3_b32 v{V_S}, v{V_S}, v{V_S+1}, v{V_S+2}', f'v_or_b32 v{V_S}, v{V_S}, v{V_S+3}',
                      f'v_add_f32 v{V_L}, v{V_L}, v{V_L+4}', f'v_add_f32 v{V_L+1}, v{V_L+1}, v{V_L+5}', f'v_readfirstlane_b32 s{S_T}, v{V_S}']
    c+=xlane_multi([V_L,V_L+1],[T,T+1],'v_add_f32')
    c+=[f'v_rcp_f32 v{T}, v{V_L}', f'v_rcp_f32 v{T+1}, v{V_L+1}']
    c+=[f's_andn2_b32 s{S_T}, s{S_T}, s{S_PASS}', 's_cbranch_scc1 K2_SLOW']
    for b in range(2):
        sc=store_ctx(b,T+b)
        for u in range(4):
            r=V_OO+b*32+u*8
            c+=[f'v_add_f32 v{r+j}, v{r+j}, v{V_P+b*32+u*8+j}' for j in range(8)]
            c+=sc[u*13:(u+1)*13]
    return c
def tail_setup():
    T=V_T
    c=[f's_lshl_b32 s{S_T}, s{S_WAVE}, 14', f'v_add_u32 v{T+4}, s{S_T}, v{V_L16}', f'v_xor_b32 v{T+5}, 16384, v{T+4}',
       f's_lshl_b32 s{S_T}, s{S_WAVE}, 9', f's_add_u32 s{S_T}, s{S_T}, {LX}', f'v_lshrrev_b32 v{T+6}, 1, v{V_L16}', f'v_add_u32 v{T+6}, s{S_T}, v{T+6}',
       f'v_mov_b32 v{T+7}, 0x5d800000']
    for b in range(4):
        c+=[f's_lshl_b32 s{S_CO+b}, s{S_RB+b}, 17', f's_lshl_b32 s{S_T}, s{S_H}, 12', f's_add_u32 s{S_CO+b}, s{S_CO+b}, s{S_T}', f's_add_u32 s{S_CO+b}, s{S_CO+b}, {WS_C}']
    return c
def slow():
    T=V_P
    c=['K2_SLOW:','s_waitcnt vmcnt(0) lgkmcnt(0)','s_barrier', f's_mov_b32 s{S_PASS}, 1']
    for b in range(6): c+=[f'v_mov_b32 v{V_NM+b*4}, v{V_NINF}']
    c+=[f'v_and_b32 v{T}, 15, v7', f'v_lshrrev_b32 v{T+1}, 4, v7', f'v_lshlrev_b32 v{T+1}, 2, v{T+1}', f'v_sub_u32 v{T}, v{T}, v{T+1}']
    for b in range(6): c+=[f's_lshl_b32 s{S_T}, s{S_RB+b}, 4', f'v_add_u32 v{T+2+b}, s{S_T}, v{T}']
    c+=[f's_lshl_b32 s{S_KO}, s{S_H}, 19', f's_sub_u32 s{S_CNT}, 16, s{S_I}', f's_lshl_b32 s{S_CNT}, s{S_CNT}, 3', 'K2_SLOWL:']
    for ds in range(4): c.append(f'buffer_load_dwordx4 {rng("a",A_K+ds*4)}, v{V_L16}, s[{SRD_WS}:{SRD_WS+3}], s{S_KO} offen offset:{ds*1024}{attn.DMAFL}')
    c.append('s_waitcnt vmcnt(0)')
    for b in range(6):
        for ds in range(4):
            C='0' if ds==0 else rng('v',T+16+b*4)
            c.append(f'{MF} {rng("v",T+16+b*4)}, {rng("a",A_K+ds*4)}, {rng("a",qreg(b,ds))}, {C}')
    c.append('s_nop 7')
    for b in range(6):
        for r in range(4):
            c+=[f'v_cmp_le_i32 vcc, {r}, v{T+2+b}','s_nop 1',f'v_cndmask_b32 v{T+16+b*4+r}, v{V_NINF}, v{T+16+b*4+r}, vcc', f'v_max_f32 v{V_NM+b*4}, v{V_NM+b*4}, v{T+16+b*4+r}']
        c+=[f'v_subrev_u32 v{T+2+b}, 16, v{T+2+b}']
    c+=[f's_add_u32 s{S_KO}, s{S_KO}, 4096', f's_sub_u32 s{S_CNT}, s{S_CNT}, 1', f's_cmp_lg_u32 s{S_CNT}, 0', 's_cbranch_scc1 K2_SLOWL']
    c+=xlane_multi([V_NM+b*4 for b in range(6)],[V_NM+b*4+1 for b in range(6)],'v_max_f32')
    c+=[f'v_accvgpr_write_b32 a{A_OP+j}, 0' for j in range(64)]
    c+=kv_offsets()
    for kind,u in (('k',0),('v',0),('k',1)):
        for pre,t in dma_ops(kind,u,1): c+=list(pre)+[t]
    c+=['s_waitcnt vmcnt(8)','s_barrier']+k0reads()+['s_waitcnt lgkmcnt(0)','s_branch K2_ATT']
    return c

def build(diag=False):
    su=['s_cmp_ge_u32 s2, 256','s_cbranch_scc1 K2_END',
        's_load_dwordx2 s[4:5], s[0:1], 48','s_load_dwordx2 s[6:7], s[0:1], 64','s_load_dwordx2 s[90:91], s[0:1], 112']
    su+=ids()+q_setup()+[f's_mov_b32 s{S_PASS}, 0','s_waitcnt lgkmcnt(0)']+srd(8,4,2048*512*2)+srd(12,6,512*4096*2)+srd(SRD_WS,90,64<<20)
    su=parse(su)
    pro,qp=qproj()
    aq,_=lgkm_waits(parse(after_q()))
    att=parse(['K2_ATT:']+set_negm()+tail_setup())
    B={}
    ALL=(0,1,2,3)
    def mk(name,iters,entry,**kw):
        code,pend,carry,over=block(iters,entry,name=name,**kw)
        B[name]=dict(code=code,pend=pend,carry=carry)
        print(f'{name}: mfma {sum(x.kind=="mfma" for x in code)} insts {len(code)} overflow {over} est {cycles(code)}')
        return B[name]
    def shift(carry,d):
        out=[]
        for pre,x in carry:
            t=list(x.tag); t[2]+=d; out.append((pre,I(x.text,tag=tuple(t))))
        return out
    d11=[('k',1),('v',1)]; d21=[('k',2),('v',1)]; d22=[('k',2),('v',2)]
    b=mk('PRO',[dict(u=-1,qk=P1(0),pv=None,nk=P1(1),nv=P1(0),dma=d11),
                dict(u=0,qk=P1(1),pv=P1(0,first=ALL),nk=P1(0),nv=P1(1),dma=d11)],None)
    c1=b['carry']; p1=b['pend']
    loopS=[f's_sub_u32 s{S_CNT}, s{S_CNT}, 1', f's_cmp_lg_u32 s{S_CNT}, 0']
    b=mk('L1',[dict(u=1,qk=P1(0),pv=P1(1),nk=P1(1),nv=P1(0),dma=d11,carry=c1),
               dict(u=2,qk=P1(1),pv=P1(0),nk=P1(0),nv=P1(1),dma=d11)],p1,loopS=loopS)
    assert b['pend']==p1 and [x[1].text for x in b['carry']]==[x[1].text for x in c1]
    b=mk('MID',[dict(u=1,qk=P1(0,'A'),pv=P1(1),nk=P1(1,'B'),nv=P1(0,'A'),dma=d21,carry=c1),
                dict(u=2,qk=P1(1,'B'),pv=P1(0,'A'),nk=P2(0),nv=P1(1,'B'),dma=d22),
                dict(u=3,qk=P2(0),pv=P1(1,'B'),nk=P2(1),nv=P2(0),dma=d22)],p1)
    c2=shift(b['carry'],-4); p2=b['pend']
    b=mk('MID0',[dict(u=-1,qk=P1(0,'A'),pv=None,nk=P1(1,'B'),nv=P1(0,'A'),dma=d21),
                dict(u=0,qk=P1(1,'B'),pv=P1(0,'A',first=ALL),nk=P2(0),nv=P1(1,'B'),dma=d22),
                dict(u=1,qk=P2(0),pv=P1(1,'B'),nk=P2(1),nv=P2(0),dma=d22)],None)
    assert b['pend']==p2
    b=mk('L2',[dict(u=0,qk=P2(1),pv=P2(0),nk=P2(0),nv=P2(1),dma=d22,carry=c2),
               dict(u=1,qk=P2(0),pv=P2(1),nk=P2(1),nv=P2(0),dma=d22)],p2,loopS=loopS)
    assert b['pend']==p2
    fin={}
    for e in range(2):
        L=lambda: P2(0,'L',e)
        eV,eD=tail_extras(16)
        mk(f'TAIL{e}',[dict(u=0,qk=P2(1),pv=P2(0),nk=L(),nv=P2(1),dma=[('v',2)],carry=c2),
                       dict(u=1,qk=L(),pv=P2(1),nk=None,nv=L(),tailpv=1),
                       dict(u=2,qk=None,pv=L(),bar=False)],p2,extraV=eV,extraD=eD)
        B[f'TAIL{e}']['code']+=parse(final())
        mk(f'MID7{e}',[dict(u=1,qk=P1(0,'A'),pv=P1(1),nk=P1(1,'B'),nv=P1(0,'A'),dma=d21,carry=c1),
                dict(u=2,qk=P1(1,'B'),pv=P1(0,'A'),nk=L(),nv=P1(1,'B'),dma=[('v',2)]),
                dict(u=3,qk=L(),pv=P1(1,'B'),nk=None,nv=L(),tailpv=1),
                dict(u=4,qk=None,pv=L(),bar=False)],p1,extraV=eV,extraD=eD)
        B[f'MID7{e}']['code']+=parse(final())
    def tailds(code):
        _,p=lgkm_waits(code); return p
    k0=[x for x in aq if x.kind=='ds'][:0]
    pp1=tailds(B['L1']['code']); pp2=tailds(B['L2']['code'])
    for nm,pe in (('PRO',[]),('MID0',[]),('L1',pp1),('MID',pp1),('MID70',pp1),('MID71',pp1),('L2',pp2),('TAIL0',pp2),('TAIL1',pp2)):
        B[nm]['code'],_=lgkm_waits(B[nm]['code'],pe)
        B[nm]['code']=fix_hazards(B[nm]['code'])
        print(nm,'with waits est',cycles(B[nm]['code']))
    nprob=0
    from asm import lds_check
    for i in range(8):
        for e in range(2):
            tr=[(x,0) for x in su+pro+qp+aq+att]
            add=lambda nm,base: tr.extend((x,base) for x in B[nm]['code'])
            if i==0: add('MID0',0); u=2
            else:
                add('PRO',0); u=1
                for _ in range(i-1): add('L1',u-1); u+=2
                if i==7: add(f'MID7{e}',u-1); u=None
                else: add('MID',u-1); u+=3
            if u is not None:
                for _ in range(6-i): add('L2',u); u+=2
                assert u==14
                add(f'TAIL{e}',u)
            nprob+=len(check([x for x,_ in tr],f'k2 i{i} e{e}'))+len(lds_check(tr,f'k2 i{i} e{e}'))
    sl=parse(slow())
    nprob+=len(check(sl+att+B['PRO']['code'],'slow'))
    print('k2 problems',nprob)
    out=su+pro+qp+aq+att
    endw=['s_branch K2_POST']
    out+=parse([f's_cmp_eq_u32 s{S_I}, 0','s_cbranch_scc1 K2_MID0'])
    out+=B['PRO']['code']
    out+=parse([f's_sub_u32 s{S_CNT}, s{S_I}, 1', f's_cmp_eq_u32 s{S_CNT}, 0','s_cbranch_scc1 K2_MID','.p2align 3','K2_L1:'])+B['L1']['code']+parse(['s_cbranch_scc1 K2_L1'])
    out+=parse([f's_cmp_eq_u32 s{S_I}, 7','s_cbranch_scc1 K2_MID7','K2_MID:'])+B['MID']['code']
    out+=parse(['K2_P2:', f's_sub_u32 s{S_CNT}, 6, s{S_I}', f's_cmp_eq_u32 s{S_CNT}, 0','s_cbranch_scc1 K2_TAIL','.p2align 3','K2_L2:'])+B['L2']['code']+parse(['s_cbranch_scc1 K2_L2'])
    out+=parse(['K2_TAIL:', f's_bitcmp1_b32 s{S_WAVE}, 0','s_cbranch_scc1 K2_TAIL1'])+B['TAIL0']['code']+parse(endw)
    out+=parse(['K2_TAIL1:'])+B['TAIL1']['code']+parse(endw)
    out+=parse(['K2_MID0:'])+B['MID0']['code']+parse(['s_branch K2_P2'])
    out+=parse(['K2_MID7:', f's_bitcmp1_b32 s{S_WAVE}, 0','s_cbranch_scc1 K2_MID71'])+B['MID70']['code']+parse(endw)
    out+=parse(['K2_MID71:'])+B['MID71']['code']+parse(endw)
    out+=sl
    out+=parse(['K2_POST:'])
    if OPT.get('conv'):
        import conv
        cv=parse(['s_waitcnt lgkmcnt(0)','s_barrier'])+conv.step2(S_WAVE,'v7',V_L16,8,32,0,SRD_WS)
        print('conv2 problems',len(check(cv,'cv2'))+len(lds_check([(x,0) for x in cv],'cv2')),'est',cycles(cv))
        out+=cv
    if diag:
        import stamp
        k=[i for i,x in enumerate(out) if x.op=='s_load_dwordx2'][0]
        out[k:k]=parse(['s_memrealtime s[92:93]','s_memtime s[94:95]'])
        k=[i for i,x in enumerate(out) if x.text=='K2_ATT:'][0]
        out[k:k]=parse(['s_memtime s[96:97]','s_waitcnt lgkmcnt(0)'])
        out+=parse(['s_waitcnt vmcnt(0)','s_memtime s[98:99]','s_memrealtime s[100:101]'])+stamp.dump(92,5,S_WAVE,6,kid=1)
    out+=parse(['K2_END:'])
    return out
if __name__=='__main__': build()
```

```python
from asm import I, parse, check, fix_hazards, lds_check
from sched import F, schedule, lgkm_waits, cycles
from k1 import srd, code_warm
MF='v_mfma_f32_16x16x32_bf16'
WS_C=32<<20
S_WAVE=20; S_RT=21; S_CT=22; S_ROT=23; S_T=28; S_M=24; S_KW=25; S_KC=26
S_SOW=32
S_SOC=36
V_L16=1; V_DW=2; V_DC=3; V_WA=4
V_T=8
NR=22; NS=10
V_ACC=16
V_CT=80
OPT=dict(rot=True,warm=True,ntw='',cfl='',depth=3)
def wreg(n,c):
    if n>=NR: n-=NR
    if n<16: return ('a',n*16+c*4)
    return ('v',144+(n-16)*16+c*4)
def w_dma(n):
    slot=n%NS
    ops=[f's_add_u32 s{S_T}, s{S_ROT}, {n}', f's_and_b32 s{S_T}, s{S_T}, 31', f's_lshl_b32 s{S_T}, s{S_T}, 15', f'v_add_u32 v{V_T}, s{S_T}, v{V_DW}']
    for j in range(4):
        ops+=[f's_add_u32 m0, s{S_M}, {slot*4096+j*1024}', 's_nop 0' if j==0 else None,
              I(f'buffer_load_dwordx4 v{V_T}, s[8:11], s{S_SOW+j} offen {OPT["ntw"]} lds',tag=('W','wo',n,slot*4096,slot*4096+4096,False))]
    res=[]
    for k,o in enumerate(ops):
        if o is None: res.append('s_nop 0')
        else: res.append(o)
    return res
def w_read(n,c,hf):
    k,b=wreg(n,c); slot=n%NS
    return I(f'ds_read_b64_tr_b16 {k}[{b+2*hf}:{b+2*hf+1}], v{V_WA+c} offset:{slot*4096+hf*2048}',tag=('R','wo',n,slot*4096,slot*4096+4096,False))
def c_addr(n): return [f's_add_u32 s{S_T}, s{S_ROT}, {n}', f's_and_b32 s{S_T}, s{S_T}, 31', f's_lshl_b32 s{S_T}, s{S_T}, 10'], f'v_add_u32 v{V_T+1+n%2}, s{S_T}, v{V_DC}'
def c_load(n,a):
    b=V_CT+(n%4)*16+a*4
    return f'buffer_load_dwordx4 v[{b}:{b+3}], v{V_T+1+n%2}, s[16:19], s{S_SOC+a} offen{OPT["cfl"]}'
def setup():
    T=V_T; L='v15'
    c=[f'v_lshrrev_b32 v{T}, 6, v0', f'v_and_b32 {L}, 63, v0', f'v_readfirstlane_b32 s{S_WAVE}, v{T}',
       f's_and_b32 s{S_RT}, s2, 7', f's_lshl_b32 s{S_RT}, s{S_RT}, 2', f's_bfe_u32 s{S_T}, s2, 0x20003', f's_add_u32 s{S_RT}, s{S_RT}, s{S_T}',
       f's_lshr_b32 s{S_CT}, s2, 5']
    if OPT['rot']: c+=[f's_lshl_b32 s{S_T}, s{S_T}, 3', f's_lshl_b32 s{S_ROT}, s{S_CT}, 2', f's_add_u32 s{S_ROT}, s{S_ROT}, s{S_T}']
    else: c+=[f's_mov_b32 s{S_ROT}, 0']
    c+=[f's_mul_i32 s{S_M}, s{S_WAVE}, {NS*4096}', f'v_lshlrev_b32 v{V_L16}, 4, {L}']
    for j in range(4): c+=[f's_mov_b32 s{S_SOW+j}, {j*8192}']
    c+=[f'v_lshrrev_b32 v{T}, 3, {L}', f'v_lshlrev_b32 v{V_DW}, 10, v{T}',
        f'v_bfe_u32 v{T+1}, {L}, 1, 2', f'v_lshrrev_b32 v{T+2}, 4, {L}', f'v_xor_b32 v{T+1}, v{T+1}, v{T+2}',
        f'v_lshl_add_u32 v{V_DW}, v{T+1}, 5, v{V_DW}', f'v_and_b32 v{T+1}, 1, {L}', f'v_lshl_add_u32 v{V_DW}, v{T+1}, 4, v{V_DW}',
        f's_lshl_b32 s{S_T}, s{S_CT}, 7', f's_lshl_b32 s{S_T+1}, s{S_WAVE}, 20', f's_add_u32 s{S_T}, s{S_T}, s{S_T+1}', f'v_add_u32 v{V_DW}, s{S_T}, v{V_DW}']
    c+=[f'v_lshrrev_b32 v{T}, 2, {L}', f'v_lshlrev_b32 v{T}, 7, v{T}', f'v_and_b32 v{T+1}, 3, {L}', f'v_lshl_add_u32 v{T}, v{T+1}, 3, v{T}',
        f'v_bfe_u32 v{T+1}, {L}, 3, 2', f'v_lshl_add_u32 v{T}, v{T+1}, 5, v{T}', f'v_add_u32 v{T}, s{S_M}, v{T}']
    for c4 in range(4): c.append(f'v_xor_b32 v{V_WA+c4}, {c4*32}, v{T}')
    c+=[f's_lshl_b32 s{S_T}, s{S_WAVE}, 15', f'v_add_u32 v{V_DC}, s{S_T}, v{V_L16}',
        f's_lshl_b32 s{S_T}, s{S_RT}, 19', f's_add_u32 s{S_SOC}, s{S_T}, {WS_C}']
    for a in range(1,4): c.append(f's_add_u32 s{S_SOC+a}, s{S_SOC}, {a<<17}')
    return c
def d1():
    c=[]; P=4
    for n in range(32+P):
        if n<32:
            if n>=NS: c.append('s_waitcnt lgkmcnt(0)')
            c+=w_dma(n)
        m=n-P
        if 0<=m<NR:
            c.append(f's_waitcnt vmcnt({4*min(P,31-m)})')
            for cc in range(4):
                for hf in range(2): c.append(w_read(m,cc,hf))
    return c
def d2():
    D=OPT['depth']
    pro=[]
    for n in range(D):
        s,v=c_addr(n); pro+=s+[v]+[c_load(n,a) for a in range(4)]
    mf=[];V=[];S=[];EV=[];pre={}
    for n in range(32):
        g0=n*16
        for a in range(4):
            for cc in range(4):
                k,b=wreg(n,cc); A=V_ACC+(a*4+cc)*4; X=V_CT+(n%4)*16+a*4
                C='0' if n==0 else f'v[{A}:{A+3}]'
                mf.append(f'{MF} v[{A}:{A+3}], {k}[{b}:{b+3}], v[{X}:{X+3}], {C}')
        m=n+D
        if m<32:
            s,v=c_addr(m)
            for x in s: S.append(F(x,lo=g0,hi=g0+1))
            V.append(F(v,lo=g0+1,hi=g0+1))
            for a in range(4): EV.append((g0+2+a*4,F(c_load(m,a),lo=g0+2+a*4,hi=g0+2+a*4)))
        r=NR+n-1
        if n>=1 and r<32:
            for k in range(8): EV.append((g0+3+(k//2)*4+(k%2),F(w_read(r,k//2,k%2),lo=g0+3+(k//2)*4+(k%2))))
    EV.sort(key=lambda e:e[0])
    code,over=schedule(mf,V,[e[1] for e in EV],S,pre)
    out=[]; pend=[x for x in parse(pro) if x.kind=='vmem']
    for x in code:
        touch=set(x.rd)|set(x.wr); last=-1
        for k,p in enumerate(pend):
            if set(p.wr)&touch: last=k
        if last>=0:
            out.append(I(f's_waitcnt vmcnt({len(pend)-1-last})')); pend=pend[last+1:]
        out.append(x)
        if x.kind=='vmem': pend.append(x)
    return parse(pro),out
RS=272
def epi():
    T=V_T; L='v15'
    c=['s_barrier',
       f'v_and_b32 v{T}, 15, {L}', f'v_mul_u32_u24 v{T}, {RS}, v{T}', f'v_lshrrev_b32 v{T+1}, 4, {L}', f'v_lshl_add_u32 v{T}, v{T+1}, 4, v{T}',
       f's_mul_i32 s{S_T}, s{S_WAVE}, {64*RS}', f'v_add_u32 v{T}, s{S_T}, v{T}',
       f'v_lshrrev_b32 v{T+1}, 3, {L}', f's_lshl_b32 s{S_T}, s{S_WAVE}, 4', f'v_add_u32 v{T+1}, s{S_T}, v{T+1}',
       f'v_mul_u32_u24 v{T+2}, {RS}, v{T+1}', f'v_and_b32 v{T+3}, 7, {L}', f'v_lshl_add_u32 v{T+2}, v{T+3}, 5, v{T+2}',
       f'v_lshlrev_b32 v{T+1}, 11, v{T+1}', f'v_lshl_add_u32 v{T+1}, v{T+3}, 4, v{T+1}',
       f's_lshl_b32 s{S_T}, s{S_RT}, 17', f's_lshl_b32 s{S_T+1}, s{S_CT}, 7', f's_add_u32 s{S_T}, s{S_T}, s{S_T+1}', f's_add_u32 s{S_T}, s{S_T}, 1024', f's_add_u32 s{S_T+1}, s{S_T}, 16384']
    for a in range(4):
        for cc in range(4):
            A=V_ACC+(a*4+cc)*4
            c.append(I(f'ds_write_b128 v{T}, v[{A}:{A+3}] offset:{a*16*RS+cc*64}',tag=('W','red',None,0,4*64*RS,True)))
    c+=['s_waitcnt lgkmcnt(0)','s_barrier']
    R=V_CT
    for j in range(2):
        for w in range(4):
            for hh in range(2):
                b=R+(j*8+w*2+hh)*4
                c.append(I(f'ds_read_b128 v[{b}:{b+3}], v{T+2} offset:{w*64*RS+j*8*RS+hh*16}',tag=('R','red',None,0,4*64*RS,True)))
    for j in range(2):
        b=R+j*32
        for e in range(8):
            c+=[f'v_add_f32 v{b+e}, v{b+e}, v{b+8+e}', f'v_add_f32 v{b+16+e}, v{b+16+e}, v{b+24+e}']
        for e in range(8): c+=[f'v_add_f32 v{b+e}, v{b+e}, v{b+16+e}']
        for e in range(4): c+=[f'v_cvt_pk_bf16_f32 v{b+e}, v{b+2*e}, v{b+2*e+1}']
        c+=[f'buffer_store_dwordx4 v[{b}:{b+3}], v{T+1}, s[12:15], s{S_T+j} offen']
    return c
def build(diag=False, extra_pre=(), extra_post=()):
    su=['s_cmp_ge_u32 s2, 256','s_cbranch_scc1 K3_END',
        's_load_dwordx4 s[4:7], s[0:1], 88','s_load_dwordx2 s[90:91], s[0:1], 112']
    su+=setup()+['s_waitcnt lgkmcnt(0)']+srd(8,4,4096*512*2)+srd(12,6,2048*1024*2)+srd(16,90,64<<20)
    if OPT['warm']:
        w,nw=code_warm('K3_END','K3_PC','v80','v81',S_T,32768); su+=w
    su=parse(su)+parse(list(extra_pre))
    a=parse(d1()); pro,b=d2()
    body=a+parse(['s_waitcnt lgkmcnt(0)'])+pro+b+parse(['s_waitcnt lgkmcnt(0)'])+parse(epi())
    body,_=lgkm_waits(body); body=fix_hazards(body)
    out=su+body+parse(list(extra_post))
    print('k3 insts',len(out),'d2 est',cycles(b),'problems',len(check(out,'k3'))+len(lds_check([(x,0) for x in out],'k3')))
    if diag:
        import stamp
        k=[i for i,x in enumerate(out) if x.op.startswith('s_load')][0]
        out[k:k]=parse(['s_memrealtime s[92:93]','s_memtime s[94:95]'])
        k=[i for i,x in enumerate(out) if x is pro[0]][0]
        out[k:k]=parse(['s_memtime s[96:97]','s_waitcnt lgkmcnt(0)'])
        out+=parse(['s_waitcnt vmcnt(0)','s_memtime s[98:99]','s_memrealtime s[100:101]'])+stamp.dump(92,5,S_WAVE,6,kid=2)
    out+=parse(['K3_END:'])
    return out
if __name__=='__main__': build()
```

```python
from asm import I, TRANS
import re

class F:
    def __init__(self, text, lo=0, hi=10**9, post=None):
        self.i = I(text) if isinstance(text,str) else text
        k = self.i.kind
        self.cls = {'valu':'V','ds':'D','vmem':'D'}.get(k,'S')
        self.cost = 2 if (self.i.op in TRANS or self.cls=='D') else 1
        self.lo=lo; self.hi=hi
        self.post = [I(p) for p in (post or [])]

def schedule(mf, V=(), D=(), S=(), pre=None):
    V=list(V); D=list(D); S=list(S); pre = pre or {}
    out=[]; over=0
    n=len(mf)
    for g in range(n):
        out.append(I(mf[g]) if isinstance(mf[g],str) else mf[g])
        used=0
        for t in pre.get(g,[]):
            out.append(I(t)); used+=1
        last = (g==n-1)
        ddue = bool(D) and D[0].hi<=g
        while S and S[0].lo<=g and ((used<1 and not ddue) or S[0].hi<=g or last):
            f=S.pop(0); out.append(f.i); used+=1
        placedD=False
        if V and V[0].cls=='D' and V[0].lo<=g and used<=1:
            f=V.pop(0); out.append(f.i); used+=2; placedD=True
        vneed = bool(V) and V[0].lo<=g
        vbig = vneed and V[0].cost==2
        while D and D[0].lo<=g and ((not placedD and used<=1 and ((used==0 and not vbig) or not vneed)) or D[0].hi<=g or last):
            f=D.pop(0); out.append(f.i); used+=2; placedD=True
            for p in f.post: out.append(p); used+=1
        if used==0: used=1
        while V and V[0].lo<=g and ((V[0].cls!='D' and used+V[0].cost<=3) or V[0].hi<=g or last):
            f=V.pop(0); out.append(f.i); used+=f.cost
        while S and S[0].lo<=g and used<3:
            f=S.pop(0); out.append(f.i); used+=1
        if used>3: over+=used-3
    assert not V and not D and not S, (len(V),len(D),len(S))
    return out, over

def lgkm_waits(code, pending=()):
    out=[]; pend=list(pending)
    for x in code:
        if x.op=='s_waitcnt':
            m=re.search(r'lgkmcnt\((\d+)\)',x.text)
            if m:
                n=int(m.group(1))
                while len(pend)>n: pend.pop(0)
            out.append(x); continue
        touch=set(x.rd)|set(x.wr)
        last=-1
        for k,p in enumerate(pend):
            if set(p.wr)&touch: last=k
        if last>=0:
            need=pend[last]
            ins=len(out); cnt=len(pend)-1-last
            j=len(out)-1; c=cnt; gaps=0; best=None
            while j>=0 and out[j] is not need and gaps<3:
                y=out[j]
                if y.kind=='label' or y.op=='s_barrier' or y.op.startswith('s_cbranch'): break
                if y.kind=='mfma':
                    nxt = out[j+1] if j+1<len(out) else x
                    if nxt.kind in ('valu','mfma'):
                        best=(j+1,c); break
                    gaps+=1
                if y.kind=='ds': c-=1
                j-=1
            if best is None: best=(ins,cnt)
            p_,c_=best
            c_=min(c_,15)
            out.insert(p_, I(f's_waitcnt lgkmcnt({c_})'))
            pend=pend[last+1:]
        out.append(x)
        if x.kind=='ds': pend.append(x)
    return out, pend

def cycles(code):
    t=0; mfree=0; vfree=0; prev=None
    for x in code:
        if x.kind=='label': continue
        if x.kind=='mfma':
            t=max(t,mfree,vfree); mfree=t+4*x.passes(); vfree=t+8; t+=4
        elif x.kind=='valu':
            t=max(t,vfree); t+= 8 if x.op in TRANS else 4
        elif x.kind in('ds','vmem'):
            if prev is not None and prev.kind=='valu': t+=4
            t+=8
        else:
            t+=4*x.states()
        prev=x
    return max(t,mfree)
```

```python
from asm import I, parse
class Stamper:
    def __init__(self, sbase=64, maxn=16):
        self.b=sbase; self.n=0; self.maxn=maxn
    def stamp(self):
        assert self.n<self.maxn
        r=self.b+2*self.n; self.n+=1
        return I(f's_memtime s[{r}:{r+1}]')
def auto_stamp(code, sbase, start_n, maxn):
    out=[]; n=start_n
    for k,x in enumerate(code):
        if x.op=='s_waitcnt' and 'lgkmcnt(0)' in x.text and k+1<len(code) and code[k+1].op=='s_barrier' and n<maxn:
            out.append(I(f's_memtime s[{sbase+2*n}:{sbase+2*n+1}]')); n+=1
        out.append(x)
    return out,n
def dump(sbase, n, swave, ws_lo, vt=0, kid=0):
    c=['s_waitcnt vmcnt(0) lgkmcnt(0)', 's_load_dwordx2 s[4:5], s[0:1], 112', 's_waitcnt lgkmcnt(0)',
       's_and_b32 s5, s5, 0xffff','s_mov_b32 s6, 0x10000000','s_mov_b32 s7, 0x20000',
       f's_lshl_b32 s3, s2, 3', f's_add_u32 s3, s3, s{swave}', 's_lshl_b32 s3, s3, 8', f's_add_u32 s3, s3, {(200<<20)+kid*(1<<20)}',
       f'v_mov_b32 v{vt}, 0']
    for k in range(n):
        c+=[f'v_mov_b32 v{vt+1}, s{sbase+2*k}', f'buffer_store_dword v{vt+1}, v{vt}, s[4:7], s3 offen offset:{4*k}']
    c+=['s_waitcnt vmcnt(0)']
    return parse(c)
```

```python
import sys
import gen, k1, k2, k3, conv, stamp
from asm import parse
def mk(path, diag=False):
    k1.OPT.update(conv=True); k2.OPT.update(conv=True)
    a,l,cp=conv.step3(k3.S_WAVE,'v15',144,40,16,12)
    post=a+l+['s_waitcnt vmcnt(0)']+cp
    ks=[dict(name='kv_kernel', code=k1.build(rot=0,diag=False), grid=256, block=256, lds=163840, vgpr=512, acc=256, sgpr=102),
        dict(name='at_kernel', code=k2.build(diag=diag), grid=256, block=256, lds=163840, vgpr=512, acc=256, sgpr=102),
        dict(name='op_kernel', code=k3.build(diag=diag,extra_post=post), grid=256, block=256, lds=163840, vgpr=512, acc=256, sgpr=102)]
    gen.emit(ks, path)
k1.OPT.update(ntw='nt',st=' sc1')
k2.OPT.update(stfl=' sc1')
mk('t_all.s',True)
k3.OPT.update(rot=False)
mk('t_alln.s',True)
mk('cdna_kernels/'+gen.NAME+'.s',False)
```

```python
from asm import I, parse, check
from sched import F, schedule, lgkm_waits, vm_waits, cycles
MF = 'v_mfma_f32_16x16x32_bf16'

V_L16=1
V_KA=2
V_VA=4
V_NINF=6
V_T=8
V_L=16
V_NM=24
V_S=48
V_P=64
V_OO=128
V_OS=192
A_Q=0
A_OP=96
A_K=160
A_V=192
QS={1:[0,1,2,3],2:[0,1,4,5]}
S_WAVE=20; S_H=21; S_I=22; S_W4K=23; S_KO=24; S_VO=25; S_CNT=26; S_PASS=27; S_T=28
S_MK=32
S_ML=64
SRD_WS=16
KSLOT=lambda u:(u%2)*32768
VSLOT=lambda u:(u%2)*32768
DMAFL=''

def qreg(b,ds): return A_Q+b*16+ds*4
def oreg(b,dt):
    if b<2: x=V_OO+(b*8+dt)*4; return f'v[{x}:{x+3}]'
    if b<4: x=V_OS+((b-2)*8+dt)*4; return f'v[{x}:{x+3}]'
    x=A_OP+((b-4)*8+dt)*4; return f'a[{x}:{x+3}]'
def preg(par,slot,ks): return V_P+par*32+slot*8+ks*4
def rng(k,b,n=4): return f'{k}[{b}:{b+n-1}]'

class Step:
    def __init__(s, ph, par, kind='plain', e=None, first=()):
        s.ph=ph; s.par=par; s.kind=kind; s.first=set(first)
        s.addr = 0 if ph==1 else 1
        s.koff=[kt*4096 for kt in range(4)]
        s.voff=[0,4096]
        full=[(sl,None) for sl in range(4)]
        if kind=='plain':
            s.tiles=[list(full) for _ in range(4)]
        elif kind=='A':
            s.tiles=[[(sl, ('k',kt) if sl==2 else None) for sl in range(4)] for kt in range(4)]
        elif kind=='B':
            s.tiles=[[(sl, ('k',kt) if sl==3 else None) for sl in (0,1,3)] for kt in range(4)]
        elif kind=='L':
            s.addr=0
            if e==0:
                slotB={0:0,3:1,1:2,2:3}; kss=[0,3]
            else:
                slotB={1:0,2:1,0:2,3:3}; kss=[1,2]
            s.tiles=[]; s.koff=[]; s.voff=[]
            for ks in kss:
                s.voff.append((ks>>1)*16384+(ks&1)*4096)
                for hf in range(2):
                    s.koff.append((2*ks+hf)*4096)
                    row=[(slotB[B], ('l',hf) if B==ks else None) for B in range(ks,4)]
                    row.sort(key=lambda x:-x[0])
                    s.tiles.append(row)
        s.pv={sl:[ks for ks in range(2) if any(x[0]==sl for x in s.tiles[2*ks])] for sl in range(4)}
    def blk(s,slot): return QS[s.ph][slot]

def kread(st,u,kt,ds,ring):
    b=A_K+(ring%2)*16+ds*4
    return f'ds_read_b128 {rng("a",b)}, v{V_KA+st.addr} offset:{KSLOT(u)+st.koff[kt]+ds*1024}'
def vread(st,u,dt,ks):
    b=A_V+(dt%4)*8+ks*4
    return f'ds_read_b128 {rng("a",b)}, v{V_VA+st.addr} offset:{VSLOT(u)+st.voff[ks]+(dt&1)*8192+(dt>>1)*1024}'
def dma_ops(kind,u,ntile):
    so = S_KO if kind=='k' else S_VO
    base = (0 if kind=='k' else 65536) + (u%2)*32768
    ops=[]
    for t in range(ntile):
        for n in range(4):
            pre=[]
            if n==0: pre=[f's_add_u32 m0, s{S_W4K}, {base+t*16384}', f's_add_u32 s{so}, s{so}, 16384']
            ops.append((pre, I(f'buffer_load_dwordx4 v{V_L16}, s[{SRD_WS}:{SRD_WS+3}], s{so} offen offset:{n*1024}{DMAFL} lds', tag=('W',kind,u,base,base+32768,True))))
    return ops

def tile_ops(sreg,lreg,pdst,alt=False):
    e=[f'v_exp_f32 v{sreg+r}, v{sreg+r}' for r in range(4)]
    a=[f'v_add_f32 v{lreg}, v{lreg}, v{sreg+r}' for r in range(4)]
    c=[f'v_cvt_pk_bf16_f32 v{pdst+j}, v{sreg+2*j}, v{sreg+2*j+1}' for j in range(2)]
    if not alt: return [(e[0],0),(e[1],2),(a[0],5),(a[1],6),(c[0],7),(e[2],8),(e[3],10),(a[2],13),(a[3],14),(c[1],15)]
    return [(e[0],0),(e[1],2),(a[0],4),(a[1],5),(e[2],6),(e[3],8),(c[0],10),(a[2],11),(a[3],13),(c[1],15)]

def block(iters, entry, extraV=None, extraD=None, name='', loopS=(), keep_last=True):
    mf=[]; D=[]; S=[]; pre={}
    T=[]
    if entry is not None: T.append(dict(r=0,t=entry,plain=True,alt=False))
    carry=[]; masks=[]
    for itn,it in enumerate(iters):
        u=it['u']; qk=it['qk']; pv=it['pv']
        plain = (qk is not None and pv is not None and qk.kind in('plain','A') and pv.kind in('plain','A'))
        chains=[]
        if qk:
            for kt in range(4):
                for (sl,mk) in qk.tiles[kt]: chains.append((kt,sl,mk))
        pvc=[]
        if pv:
            order=[0,1,2,3] if pv.kind!='L' else [3,2,0,1]
            for dt in range(8):
                for sl in order:
                    if pv.pv[sl]: pvc.append((dt,sl,pv.pv[sl]))
        nch=len(chains)
        nper=nch+it.get('tailpv',0) if chains else 1
        npvm=sum(len(c[2]) for c in pvc)
        g_it=len(mf)
        k_first={}; k_last={}; v_first={}; v_last={}; o_last={}
        done=0; ip=0
        sring=(16-nch)%4
        for p in range(nper):
            if p<nch:
                kt,sl,mk=chains[p]; b=qk.blk(sl)
                sreg=V_S+(sring%4)*4; sring+=1
                if mk is not None: masks.append((len(T),len(mf),sreg,mk,b))
                for ds in range(4):
                    C = rng('v',V_NM+b*4) if (mk is None and ds==0) else rng('v',sreg)
                    k_first.setdefault((kt,ds),len(mf)); k_last[(kt,ds)]=len(mf)
                    mf.append(f'{MF} {rng("v",sreg)}, {rng("a",A_K+(kt%2)*16+ds*4)}, {rng("a",qreg(b,ds))}, {C}')
                T.append(dict(r=len(mf)-1+5,t=(sreg,V_L+b,preg(qk.par,sl,kt>>1)+2*(kt&1)),plain=plain,alt=(plain and p==11)))
            tgt=(npvm*(p+1)+nper-1)//nper
            while ip<len(pvc) and done<tgt:
                dt,sl,kss=pvc[ip]; ip+=1; b=pv.blk(sl)
                for j,ks in enumerate(kss):
                    C='0' if (b in pv.first and j==0) else oreg(b,dt)
                    v_first.setdefault((dt,ks),len(mf)); v_last[(dt,ks)]=len(mf); o_last[(b,dt)]=len(mf)
                    mf.append(f'{MF} {oreg(b,dt)}, {rng("a",A_V+(dt%4)*8+ks*4)}, {rng("v",preg(pv.par,sl,ks))}, {C}')
                    done+=1
        g_end=len(mf)
        it['g0']=g_it; it['g1']=g_end; it['o_last']=o_last
        vf=lambda d:min(v for (dd,ks),v in v_first.items() if dd==d)
        vl=lambda d:max(v for (dd,ks),v in v_last.items() if dd==d)
        if plain: gb=g_it+12*8+5
        else:
            cand=[g_it]
            if chains: cand.append(k_first[(3,0)])
            if pvc: cand.append(vf(6))
            gb=max(cand)+4
        it['gb']=gb
        ev=[]
        def tag(f,*t): f.i.tag=t; return f
        def spread(ops,lo,hi):
            n=len(ops)
            for j,(o,t) in enumerate(ops):
                g=lo+(hi-lo)*j//max(n,1)
                ev.append((g,tag(F(o,lo=g,hi=g+1),*t)))
        KR=lambda st,uu,kt,ds:(kread(st,uu,kt,ds,kt),('R','k',uu,KSLOT(uu),KSLOT(uu)+32768,True))
        VR=lambda st,uu,dt,ks:(vread(st,uu,dt,ks),('R','v',uu,65536+VSLOT(uu),65536+VSLOT(uu)+32768,True))
        if plain:
            for p in range(16):
                gk=g_it+p*8+(2 if p!=12 else 6); gv=g_it+p*8+(6 if p!=12 else 7)
                kt=p//4+1; ds=p%4
                o=None
                if kt<4: o=KR(qk,u+1,kt,ds)
                elif it.get('nk'): o=KR(it['nk'],u+2,0,ds)
                if o: ev.append((gk,tag(F(o[0],lo=gk,hi=gk),*o[1])))
                dt=p//2+2; ks=p%2
                o=VR(pv,u,dt,ks) if dt<8 else VR(it['nv'],u+1,dt-8,ks)
                ev.append((gv,tag(F(o[0],lo=gv,hi=gv),*o[1])))
        else:
            if chains:
                for kt in range(1,4):
                    lo = k_last[(kt-2,3)] if kt>=2 else g_it
                    hi = k_first[(kt,0)]-3
                    spread([KR(qk,u+1,kt,ds) for ds in range(4)], lo, max(hi,lo))
            if pvc:
                for dt in range(2,8):
                    spread([VR(pv,u,dt,ks) for ks in range(2)], vf(dt-2), vf(dt-1))
            kk=[KR(it['nk'],u+2,0,ds) for ds in range(4)] if it.get('nk') else []
            vv=[VR(it['nv'],u+1,dt,ks) for dt in range(2) for ks in range(2)] if it.get('nv') else []
            tailops=[]
            for j in range(4):
                if kk: tailops.append(kk[j])
                if vv: tailops.append(vv[j])
            if tailops:
                assert gb+1+len(tailops)<=g_end+2,(name,gb,g_end)
                if chains: assert gb>=k_last[(2,3)]
                if pvc: assert gb>=vl(5)
                spread(tailops, gb+1, g_end-1)
        if it.get('bar',True):
            pre.setdefault(gb-1,[]).append(f's_waitcnt vmkey(k{u+2}|v{u+1}) lgkmcnt(0)' if it.get('vmkey') else f's_waitcnt vmcnt({it.get("vm",0)}) lgkmcnt(0)')
            pre.setdefault(gb,[]).append('s_barrier')
            for x in it.get('post_bar',[]): pre.setdefault(gb,[]).append(x)
        for off,x in it.get('dev',[]): ev.append((g_it+off,F(x,lo=g_it+off,hi=g_it+off)))
        for off,x in it.get('sev',[]): S.append(F(x,lo=g_it+off,hi=g_it+off+1))
        for off,x in it.get('vev',[]): pre.setdefault(g_it+off,[]).append(x)
        def place_dma(ops,gaps):
            prev=None
            for k,((prs,txt),g) in enumerate(zip(ops,gaps)):
                if prs:
                    if plain or prev is None:
                        for j,x in enumerate(prs): S.append(F(x,lo=g-3+j,hi=g-2+j))
                    else: prev.post=[I(x) for x in prs]
                prev=F(txt,lo=g,hi=g if plain else g+1)
                ev.append((g,prev))
        if itn==0: carry=it.get('carry',[])
        if carry:
            gaps=[g_it+3+4*j for j in range(len(carry))]
            assert gaps[-1]<gb-8,(name,gaps,gb)
            place_dma(carry,gaps)
        new=[]
        for kind,nt in it.get('dma',[]):
            new+=dma_ops(kind,(u+3) if kind=='k' else (u+2),nt)
        nnow=min(len(new),6)
        if plain: gaps=[g_it+13*8+3+4*j for j in range(nnow)]
        else:
            lo=gb+4; gaps=[min(lo+(g_end-1-lo)*j//6,g_end-1) for j in range(nnow)]
        place_dma(new[:nnow],gaps)
        carry=new[nnow:]
        D+=ev
    n=len(mf)
    pend=None
    if keep_last and T and iters[-1]['qk'] is not None:
        last=T.pop(); pend=last['t']; rend=n
    else: rend=None
    V=[]
    mk_at={m[0]-2:m for m in masks}
    for k,t in enumerate(T):
        r=t['r']; r1=T[k+1]['r'] if k+1<len(T) else (rend if rend is not None else r+8)
        r=min(r,n-1); L=max(r1-r,0)
        if k in mk_at:
            _,gm,sreg,mk,b=mk_at.pop(k)
            for rr in range(4):
                sm = (S_MK+(mk[1]*4+rr)*2) if mk[0]=='k' else (S_ML+(mk[1]*4+rr)*2)
                V.append(F(f'v_cndmask_b32 v{sreg+rr}, v{V_NINF}, v{V_NM+b*4}, s[{sm}:{sm+1}]',lo=max(0,gm-9),hi=max(0,gm-3)))
        fixed = t['plain'] and L==8
        for txt,pos in tile_ops(*t['t'],t['alt']):
            hi=min(r+pos*L//16,n-1)
            V.append(F(txt,lo=hi if fixed else r,hi=hi))
    assert not mk_at,(name,mk_at)
    if extraV: V=extraV(V,iters,n)
    if extraD: D+=extraD(iters,n)
    mfi=[I(x) for x in mf]
    for f in V:
        w=set(f.i.wr)
        if f.i.op.startswith('v_cvt_pk') or f.i.op.startswith('v_cndmask'):
            for g in range(f.lo+1,n):
                if w & set(mfi[g].rd):
                    f.hi=min(f.hi,max(g-3,0)); break
    for j in range(len(V)-2,-1,-1): V[j].hi=min(V[j].hi,V[j+1].hi)
    for f in V:
        if f.hi<f.lo: f.lo=f.hi
    D.sort(key=lambda e:e[0]); D=[e[1] for e in D]
    for j,x in enumerate(loopS): S.append(F(x,lo=n-8+j,hi=n-4+j))
    S.sort(key=lambda f:f.lo)
    for Q in (D,S):
        for j in range(len(Q)-2,-1,-1): Q[j].hi=max(min(Q[j].hi,Q[j+1].hi),Q[j].lo)
    code,over=schedule(mfi,V,D,S,pre)
    code,_=vm_waits(code)
    return code,pend,carry,over
```

```python
from asm import I, parse, check, fix_hazards, lds_check
from sched import F, schedule, lgkm_waits, vm_waits, vm_reg_waits, cycles
import attn, k2, conv, phasey
from attn import *
from k2 import (ids, masks, after_q, set_negm, tail_setup, kv_offsets, k0reads, CSCALE, S_RB, S_CO, QX, XB, WB)
from k1 import srd
WS_F=60<<20
OPT=dict(ntw='nt', ntwq='', kvst=' sc1', touch=1, diag=False, conv=True, pub=2, pollg=4, nstA=6, stB=[1,1,0,0,0,2,3,3], st0=8, ntcv='nt')
k2.OPT.update(stfl=' sc1', early_short=True)
S_SOC=32; S_SOW=40; S_ST=48; S_SOX=56; S_SOQ=64; S_M8=68; S_MW=69; S_C=70; S_X=72
S_CB=71; S_FL=99; S_TB=100; S_TS=79
VA_A=2; VA_DC=4; VA_DW=5; VA_W=8; VB_XA=12; VB_WA=8; VB_DX=4; VB_DW=5; VT=20
WS_Q=56<<20
def R(o): return ('a',8*o) if o<4 else ('v',32+(o-4)*8)
def tile_reg(mat,a,c):
    o,hi = ((a>>1)*8+(c>>1)*2+(a&1),c&1) if mat==0 else ((a>>1)*8+c,a&1)
    k,b=R(o); return k,b+4*hi,o
QORD=sorted(range(4,32),key=lambda o:((o&7)>>1,o))
def qacc(a,c):
    q=c*4+a
    return ('a',160+4*q) if q<4 else ('v',R(QORD[q-4])[1]+4)
afrag=lambda t,a,s: 32+(t%2)*64+(a*2+s)*4
wfrag=lambda c,s: 160+(c%4)*8+s*4
A_X=32; A_W=192
def a_dma(kind,t):
    ops=[]
    for n in range(8):
        if kind=='c':
            b=(t%2)*32768
            ops.append((I(f'buffer_load_dwordx4 v{VA_DC}, s[8:11], s{S_SOC+n} offen lds',tag=('W','c',t,b,b+32768,True)), f's_add_u32 m0, s{S_M8}, {b+n*1024}'))
        else:
            b=65536+(t%3)*32768
            ops.append((I(f'buffer_load_dwordx4 v{VA_DW}, s[12:15], s{S_SOW+n} offen {OPT["ntw"]} lds',tag=('W','w',t,b,b+32768,True)), f's_add_u32 m0, s{S_M8}, {b+n*1024}'))
    return ops
def q_dma(kind,t):
    ops=[]
    if kind=='x':
        for n in range(8):
            ops.append((I(f'buffer_load_dwordx4 v{VB_DX}, s[8:11], s{S_SOX+n} offen lds',tag=('W','x',t,XB[t%3],XB[t%3]+32768,False)), f's_add_u32 m0, s{S_M8}, {XB[t%3]+n*1024}'))
    else:
        for n in range(4):
            ops.append((I(f'buffer_load_dwordx4 v{VB_DW}, s[12:15], s{S_SOQ+n} offen lds',tag=('W','wq',t,WB[t%3],WB[t%3]+16384,True)), f's_add_u32 m0, s{S_MW}, {WB[t%3]+n*1024}'))
    return ops
def bump(kind):
    v,d={'c':(VA_DC,128),'w':(VA_DW,64*8192),'x':(VB_DX,128),'wq':(VB_DW,64*8192)}[kind]
    return f'v_add_u32 v{v}, {d}, v{v}'
def a_read(t,a,s):
    b=afrag(t,a,s); base=(t%2)*32768
    return I(f'ds_read_b128 a[{b}:{b+3}], v{VA_A+s} offset:{base+a*2048}',tag=('R','c',t,base,base+32768,True))
def w_read(t,c,s,hf):
    b=wfrag(c,s)+2*hf; wb=t%3; base=65536+wb*32768
    return I(f'ds_read_b64_tr_b16 a[{b}:{b+1}], v{VA_W+(c%4)+(4 if wb==2 else 0)} offset:{(wb%2)*32768+(c>>2)*8192+s*4096+hf*2048}',tag=('R','w',t,base,base+32768,True))
def x_read(t,a,s):
    b=A_X+(t%2)*32+(a*2+s)*4; base=XB[t%3]
    return I(f'ds_read_b128 a[{b}:{b+3}], v{VB_XA+s+(2 if base>=65536 else 0)} offset:{base%65536+a*2048}',tag=('R','x',t,base,base+32768,False))
def wq_read(t,c,s,hf):
    b=A_W+(c%4)*8+s*4+2*hf
    return I(f'ds_read_b64_tr_b16 a[{b}:{b+1}], v{VB_WA+c%4} offset:{WB[t%3]-98304+(c>>2)*8192+s*4096+hf*2048}',tag=('R','wq',t,WB[t%3],WB[t%3]+16384,True))
def kv_store(o,reg):
    so=(S_ST+(o>>3)*2+(o&1)) if o<16 else ((o>>3)*2+(o&1))
    return I(f'buffer_store_dwordx4 v[{reg}:{reg+3}], v{V_L16}, s[16:19], s{so} offen offset:{((o&7)>>1)*1024}{OPT["kvst"]}',tag=('K','st0' if o<8 else 'st1'))
def pack(o,lo,tmp):
    k,b=R(o); ops=[]
    if k=='a':
        for j in range(8): ops.append(F(f'v_accvgpr_read_b32 v{tmp+j}, a{b+j}',lo=lo))
        b=tmp
    for j in range(4): ops.append(F(f'v_cvt_pk_bf16_f32 v{b+j}, v{b+2*j}, v{b+2*j+1}',lo=lo))
    return ops,b

def setup():
    T=VT; L='v7'; S=S_T
    c=['s_cmp_ge_u32 s2, 256','s_cbranch_scc1 F_END',
       f's_load_dwordx8 s[72:79], s[0:1], 48',
       f's_load_dwordx2 s[4:5], s[0:1], 80',
       f's_load_dwordx2 s[16:17], s[0:1], 112',
       f's_load_dwordx2 s[90:91], s[0:1], 88', f's_load_dwordx4 s[92:95], s[0:1], 96',
       f's_load_dwordx8 s[56:63], s[0:1], 0']
    c+=[f'v_lshrrev_b32 v{T}, 6, v0', f'v_and_b32 {L}, 63, v0', f'v_readfirstlane_b32 s{S_WAVE}, v{T}',
        f's_and_b32 s{S_H}, s2, 7', f's_lshl_b32 s{S_H}, s{S_H}, 2', f's_bfe_u32 s{S}, s2, 0x20003', f's_add_u32 s{S_H}, s{S_H}, s{S}',
        f's_lshr_b32 s{S_I}, s2, 5', f's_lshl_b32 s{S_M8}, s{S_WAVE}, 13']
    for n in range(8): c.append(f's_mov_b32 s{S_SOC+n}, {((n>>2)*512+(n&3)*8)*1024}')
    c+=[f'v_lshrrev_b32 v{T}, 3, {L}', f'v_and_b32 v{T+1}, 6, v{T}', f'v_xor_b32 v{T+1}, v{T+1}, {L}', f'v_and_b32 v{T+1}, 7, v{T+1}',
        f'v_lshlrev_b32 v{T+1}, 4, v{T+1}', f'v_lshl_add_u32 v{VA_DC}, v{T}, 10, v{T+1}',
        f's_lshl_b32 s{S}, s{S_I}, 16', f's_and_b32 s{S+1}, s{S_WAVE}, 1', f's_lshl_b32 s{S+2}, s{S+1}, 20', f's_add_u32 s{S}, s{S}, s{S+2}',
        f's_lshr_b32 s{S+2}, s{S_WAVE}, 1', f's_lshl_b32 s{S+2}, s{S+2}, 15', f's_add_u32 s{S_CB}, s{S}, s{S+2}', f'v_add_u32 v{VA_DC}, s{S_CB}, v{VA_DC}']
    c+=['s_waitcnt lgkmcnt(0)']+srd(8,74,2048*512*2)
    for d,m in a_dma('c',0): c+=[m,'s_nop 0',d]
    for n in range(8): c.append(f's_mov_b32 s{S_SOW+n}, {(32*(n>>2)+16*(n&1)+4*((n>>1)&1))*8192}')
    c+=[f'v_lshrrev_b32 v{T+1}, 2, v{T}', f'v_lshlrev_b32 v{T+1}, 3, v{T+1}', f'v_and_b32 v{T+2}, 3, v{T}', f'v_add_u32 v{T+1}, v{T+1}, v{T+2}',
        f'v_lshlrev_b32 v{VA_DW}, 13, v{T+1}',
        f'v_bfe_u32 v{T+1}, {L}, 1, 2', f'v_lshrrev_b32 v{T+2}, 4, {L}', f'v_xor_b32 v{T+1}, v{T+1}, v{T+2}',
        f'v_lshl_add_u32 v{VA_DW}, v{T+1}, 5, v{VA_DW}', f'v_and_b32 v{T+1}, 1, {L}', f'v_lshl_add_u32 v{VA_DW}, v{T+1}, 4, v{VA_DW}',
        f's_lshl_b32 s{S}, s{S_H}, 8', f's_lshl_b32 s{S+1}, s{S+1}, 7', f's_add_u32 s{S}, s{S}, s{S+1}',
        f'v_add_u32 v{VA_DW}, s{S}, v{VA_DW}']
    c+=[f's_cmp_lt_u32 s{S_WAVE}, 2', 's_cselect_b32 s12, s78, s4', 's_cselect_b32 s13, s79, s5', 's_and_b32 s13, s13, 0xffff', f's_mov_b32 s14, {512*4096*2}', 's_mov_b32 s15, 0x20000']
    for d,m in a_dma('w',0): c+=[m,'s_nop 0',d]
    c+=['s_and_b32 s17, s17, 0xffff', f's_mov_b32 s18, {128<<20}', 's_mov_b32 s19, 0x20000']
    c+=[f's_getpc_b64 s[{S}:{S+1}]','F_PC:', f's_lshr_b32 s{S+2}, s2, 3', f's_lshl_b32 s{S+2}, s{S+2}, 2', f's_add_u32 s{S+2}, s{S+2}, s{S_WAVE}', f's_lshl_b32 s{S+2}, s{S+2}, 10',
        f'v_and_b32 v{T}, 7, {L}', f'v_lshlrev_b32 v{T}, 7, v{T}', f'v_add_u32 v{T}, s{S+2}, v{T}', f'v_min_u32 v{T}, F_END-F_PC, v{T}',
        f'global_load_dword a249, v{T}, s[{S}:{S+1}]']
    for kind,t in (('c',1),('w',1)):
        c.append(bump(kind))
        for d,m in a_dma(kind,t): c+=[m,'s_nop 0',d]
    c+=[f'v_mov_b32 v{T+1}, 0', f's_lshl_b32 s{S_FL}, s2, 7', f's_add_u32 s{S_FL}, s{S_FL}, {WS_F}',
        I(f'buffer_store_dword v{T+1}, v{T+1}, s[16:19], s{S_FL} offen sc1',tag=('K','rst'))]
    c+=[x for x in ids()[8:]]
    c+=[f's_mov_b32 s{S_PASS}, 0']
    c+=[f'v_and_b32 v{T}, 15, {L}', f'v_lshrrev_b32 v{T+1}, 4, {L}', f'v_and_b32 v{T+2}, 6, v{T}', f'v_xor_b32 v{T+1}, v{T+1}, v{T+2}',
        f'v_lshlrev_b32 v{T+1}, 4, v{T+1}', f'v_lshl_add_u32 v6, v{T}, 7, v{T+1}',
        f's_lshr_b32 s{S}, s{S_WAVE}, 1', f's_lshl_b32 s{S}, s{S}, 14', f'v_add_u32 v{VA_A}, s{S}, v6', f'v_xor_b32 v{VA_A+1}, 64, v{VA_A}']
    c+=[f'v_lshrrev_b32 v{T}, 2, {L}', f'v_lshlrev_b32 v{T}, 7, v{T}', f'v_and_b32 v{T+1}, 3, {L}', f'v_lshl_add_u32 v{T}, v{T+1}, 3, v{T}',
        f'v_bfe_u32 v{T+1}, {L}, 3, 2', f'v_lshl_add_u32 v{T}, v{T+1}, 5, v{T}',
        f's_and_b32 s{S}, s{S_WAVE}, 1', f's_lshl_b32 s{S}, s{S}, 14', f's_add_u32 s{S}, s{S}, 65536', f'v_add_u32 v{T}, s{S}, v{T}']
    for c4 in range(4): c+=[f'v_xor_b32 v{VA_W+c4}, {c4*32}, v{T}', f'v_add_u32 v{VA_W+4+c4}, 65536, v{VA_W+c4}']
    c+=[f's_lshl_b32 s{S}, s{S_H}, 19', f's_lshl_b32 s{S+1}, s{S_I}, 14', f's_add_u32 s{S}, s{S}, s{S+1}',
        f's_lshr_b32 s{S+1}, s{S_WAVE}, 1', f's_lshl_b32 s{S+2}, s{S+1}, 13', f's_lshl_b32 s{S+1}, s{S+1}, 12', f's_add_u32 s{S+1}, s{S+1}, {16<<20}',
        f's_bitcmp1_b32 s{S_WAVE}, 0', f's_cselect_b32 s{S+1}, s{S+1}, s{S+2}', f's_movk_i32 s{S+2}, 4096', f's_cselect_b32 s{S+2}, 8192, s{S+2}',
        f's_add_u32 s{S_ST}, s{S}, s{S+1}', f's_add_u32 s{S_ST+1}, s{S_ST}, s{S+2}']
    for n in range(2,8): c+=[f's_add_u32 s{S_ST+n}, s{S_ST+n-2}, {8*16384}']
    c+=[f's_lshr_b32 s{S}, s{S_WAVE}, 1', f's_lshl_b32 s{S}, s{S}, 18']
    for n in range(4): c+=[f's_add_u32 s{S_SOQ+n}, s{S}, {(16*(n&1)+4*(n>>1))*8192}']
    c+=[f's_and_b32 s{S}, s{S_WAVE}, 1', f's_lshl_b32 s{S}, s{S}, 13', f's_lshr_b32 s{S+1}, s{S_WAVE}, 1', f's_lshl_b32 s{S+1}, s{S+1}, 12', f's_add_u32 s{S_MW}, s{S}, s{S+1}',
        f's_mov_b32 s{S_C}, {CSCALE:#x}']
    c+=kv_offsets()
    c+=[f's_cmp_lt_u32 s{S_WAVE}, 2', f's_cselect_b32 s{S_TB}, s76, s72', f's_cselect_b32 s{S_TB+1}, s77, s73', f's_movk_i32 s{S}, 256', f's_cselect_b32 s{S_TS}, {128*8192}, s{S}',
        's_cselect_b64 vcc, -1, 0',
        f's_lshl_b32 s{S}, s{S_I}, 17', f's_lshl_b32 s{S+1}, s{S_H}, 8', f's_add_u32 s{S}, s{S}, s{S+1}', f's_and_b32 s{S+2}, s{S_WAVE}, 1', f's_lshl_b32 s{S+1}, s{S+2}, 7', f's_add_u32 s{S}, s{S}, s{S+1}',
        f'v_and_b32 v{T}, 15, {L}', f'v_lshlrev_b32 v{T}, 13, v{T}', f'v_add_u32 v{T}, s{S}, v{T}',
        f's_lshl_b32 s{S}, s2, 13', f's_lshl_b32 s{S+1}, s{S+2}, 12', f's_add_u32 s{S}, s{S}, s{S+1}',
        f'v_and_b32 v{T+1}, 3, {L}', f'v_lshlrev_b32 v{T+1}, 10, v{T+1}', f'v_bfe_u32 v{T+2}, {L}, 2, 1', f'v_lshl_add_u32 v{T+1}, v{T+2}, 7, v{T+1}', f'v_add_u32 v{T+1}, s{S}, v{T+1}',
        f'v_cndmask_b32 v0, v{T+1}, v{T}, vcc']
    if OPT['touch']==2:
        c+=[f'v_mov_b32 v{T}, s{S_RB}', f'v_mov_b32 v{T+1}, s{S_RB+1}', 'v_cmp_le_u32 vcc, 16, v7', 's_nop 1', f'v_cndmask_b32 v{T}, v{T}, v{T+1}, vcc',
            f'v_mov_b32 v{T+1}, s{S_RB+2}', 'v_cmp_le_u32 vcc, 32, v7', 's_nop 1', f'v_cndmask_b32 v{T}, v{T}, v{T+1}, vcc',
            f'v_mov_b32 v{T+1}, s{S_RB+3}', 'v_cmp_le_u32 vcc, 48, v7', 's_nop 1', f'v_cndmask_b32 v{T}, v{T}, v{T+1}, vcc',
            f'v_lshlrev_b32 v{T}, 14, v{T}', f'v_and_b32 v{T+1}, 15, v7', f'v_lshl_add_u32 v{T}, v{T+1}, 10, v{T}', f's_and_b32 s{S}, s{S_H}, 3', f's_lshl_b32 s{S}, s{S}, 8', f'v_add_u32 v31, s{S}, v{T}']
    c+=['s_mov_b32 s4, s58','s_and_b32 s5, s59, 0xffff', f's_mov_b32 s6, {2048*1024}', 's_mov_b32 s7, 0x20000']
    c+=['s_waitcnt vmkey(c0)','s_barrier']
    for a in range(8):
        for s in range(2): c.append(a_read(0,a,s))
        if a==5: c.append('s_waitcnt lgkmcnt(4)')
    c+=['s_waitcnt vmkey(w0|c1) lgkmcnt(0)','s_barrier']
    for s in range(2):
        for hf in range(2): c.append(w_read(0,0,s,hf))
    return c

def conv1(g0):
    L='v7'; S=S_T
    aK=192; aV=204; aW=216; aQ=240; aO=224
    A=16
    o=conv.tile_ids(S+3,S,S_WAVE,A,L)
    o+=[f'v_subrev_u32 v19, 4096, v{A}', f'v_lshlrev_b32 v20, 4, v17', f's_movk_i32 s3, 4096']
    def ld(dst,r,key):
        base,so=(19,'0') if r<4 else ((A,'0') if r<8 else (A,'s3'))
        return I(f'buffer_load_dword a{dst}, v{base}, s[4:7], {so} offen offset:{(r%4)*1024} {OPT["ntcv"]}',tag=('K',key))
    for r in range(12): o.append(ld(aK+r,r,'cv'))
    o+=['s_mov_b32 s4, s60','s_and_b32 s5, s61, 0xffff']
    for r in range(3,12): o.append(ld(aV+r-3,r,'cv'))
    o+=['s_mov_b32 s4, s62','s_and_b32 s5, s63, 0xffff','s_movk_i32 s6, 4096', I(f'buffer_load_dwordx4 a[{aW}:{aW+3}], v20, s[4:7], 0 offen',tag=('K','cv'))]
    o+=['s_mov_b32 s4, s56','s_and_b32 s5, s57, 0xffff',f's_mov_b32 s6, {2048*1024}']
    for r in range(4,12): o.append(ld(aQ+r-4,r,'cv'))
    loads=o
    WF=[19,20,21,22]; KF=[24,25,26,27]; U=[30,31]; T=17
    c=[]
    for ch in range(2):
        un=(lambda d: f'v_lshlrev_b32 v{d}, 16, v{d}') if ch==0 else (lambda d: f'v_and_b32 v{d}, 0xffff0000, v{d}')
        for j in range(4):
            c+=[f'v_accvgpr_read_b32 v{WF[j]}, a{aW+2*ch+j//2}', f'v_lshlrev_b32 v{WF[j]}, 16, v{WF[j]}' if j%2==0 else f'v_and_b32 v{WF[j]}, 0xffff0000, v{WF[j]}']
        for r in range(3): c+=[f'v_accvgpr_read_b32 v{KF[r%4]}, a{aK+r}', un(KF[r%4])]
        for t in range(9):
            u=U[t%2]; r=t+3
            c+=[f'v_accvgpr_read_b32 v{KF[r%4]}, a{aK+r}', un(KF[r%4]),
                f'v_mul_f32 v{u}, v{KF[t%4]}, v{WF[3]}', f'v_fmac_f32 v{u}, v{KF[(t+1)%4]}, v{WF[2]}', f'v_fmac_f32 v{u}, v{KF[(t+2)%4]}, v{WF[1]}', f'v_fmac_f32 v{u}, v{KF[(t+3)%4]}, v{WF[0]}',
                f'v_accvgpr_read_b32 v{T}, a{aV+t}', un(T), f'v_mul_f32 v{u}, v{u}, v{T}']
            if t>=1:
                dst = aO+ch*8+((8-t)//2 if t%2==0 else 4+(7-t)//2)
                c+=[f'v_cvt_pk_bf16_f32 v{T}, v{u}, v{U[(t-1)%2]}', f'v_accvgpr_write_b32 a{dst}, v{T}']
    return loads,c
SP=131072
def conv1_lds():
    S=S_T; T=48
    c=[f'v_and_b32 v{T}, 31, v7', f'v_lshrrev_b32 v{T+1}, 5, v7', f's_lshl_b32 s{S}, s{S_WAVE}, 1', f's_sub_u32 s{S}, 7, s{S}', f'v_sub_u32 v{T+1}, s{S}, v{T+1}',
       f'v_xor_b32 v{T+1}, v{T+1}, v{T}', f'v_and_b32 v{T+1}, 7, v{T+1}', f'v_mul_u32_u24 v{T}, 768, v{T}', f'v_lshl_add_u32 v{T}, v{T+1}, 4, v{T}', f'v_add_u32 v{T}, {SP}, v{T}']
    for k in range(6): c.append(I(f'ds_write_b128 v{T}, a[{224+4*k}:{227+4*k}] offset:{k*128}',tag=('W','c1',None,SP,SP+24576,True)))
    c+=[f'v_lshrrev_b32 v{T+1}, 3, v7', f's_lshl_b32 s{S}, s{S_WAVE}, 3', f'v_add_u32 v{T+2}, s{S}, v{T+1}', f'v_xor_b32 v{T+1}, v{T+1}, v7', f'v_and_b32 v{T+1}, 7, v{T+1}',
        f'v_mul_u32_u24 v0, 768, v{T+2}', f'v_lshl_add_u32 v0, v{T+1}, 4, v0', f'v_add_u32 v0, {SP}, v0',
        f's_and_b32 s{S}, s2, 7', f's_lshl_b32 s{S}, s{S}, 5', f'v_add_u32 v{T+2}, s{S}, v{T+2}', f'v_mul_u32_u24 v22, 24576, v{T+2}', f'v_and_b32 v{T+1}, 7, v7', f'v_lshl_add_u32 v22, v{T+1}, 4, v22',
        f's_lshr_b32 s{S}, s2, 3', f's_sub_u32 s{S}, 31, s{S}', f's_lshl_b32 s{S}, s{S}, 7', f's_add_u32 s{S}, s{S}, {phasey.WS_U}', f'v_add_u32 v22, s{S}, v22']
    return c

def place(grp,pos,EV,S,V):
    prev=None; pg=None
    for (bk,d,m),g in zip(grp,pos):
        if bk: V.append(F(bump(bk),lo=(g-3 if pg is None else pg),hi=g-1))
        if prev is None: S.append(F(m,lo=g-2,hi=g-1))
        else: prev.post=[I(m)]
        prev=F(d,lo=g,hi=g+1); pg=g; EV.append((g,prev))
def grp_of(fn,kind,t,bk):
    return [((bk if n==0 else None),d,m) for n,(d,m) in enumerate(fn(kind,t))]

def phaseA(mat):
    mf=[];S=[];V=[];pre={};EV=[];G=[]
    for t in range(8):
        g0=t*128
        for c in range(8):
            for a in range(8):
                for s in range(2):
                    A=afrag(t,a,s); W=wfrag(c,s); k,b,o=tile_reg(mat,a,c); acc=f'{k}[{b}:{b+3}]'
                    x,y=(f'a[{W}:{W+3}]',f'a[{A}:{A+3}]') if mat==0 else (f'a[{A}:{A+3}]',f'a[{W}:{W+3}]')
                    mf.append(f'{MF} {acc}, {x}, {y}, {"0" if (t==0 and s==0) else acc}')
        for c in range(8):
            tt,cc=(t,c+1) if c<7 else (t+1,0)
            if tt<8:
                for k,(s,hf) in enumerate(((0,0),(0,1),(1,0),(1,1))):
                    g=g0+c*16+k+(2 if c==7 else 0); EV.append((g,F(w_read(tt,cc,s,hf),lo=g)))
        pos=[5,9,13,21,25,29,37,45]+[53+8*k for k in range(8)] if t==0 else [g0-9,g0-3]+[g0+5+8*k for k in range(14)]
        if t<6: grp=grp_of(a_dma,'c',t+2,'c')+grp_of(a_dma,'w',t+2,'w')
        elif t==6:
            grp=grp_of(q_dma,'x',0,None)+grp_of(q_dma,'wq',0,None)+grp_of(q_dma,'wq',1,'wq')
            for j,x in enumerate(srd(8,72,2048*512*2)[:2]+srd(12,76,0)[:2]): S.append(F(x,lo=g0-15,hi=g0-12))
            sx=[]
            for n in range(8):
                sx+=[f's_lshl_b32 s{S_SOX+n}, s{S_RB+(n>>1)}, 14']
                if n&1: sx+=[f's_add_u32 s{S_SOX+n}, s{S_SOX+n}, 8192']
            sx+=[f's_add_u32 s{S_CB}, s{S_CB}, {7*128}']
            for x in sx: S.append(F(x,lo=g0-60,hi=g0-30))
            V.append(F(f'v_subrev_u32 v{VB_DX}, s{S_CB}, v{VA_DC}',lo=g0-28,hi=g0-20))
            V.append(F(f'v_subrev_u32 v{VB_DW}, {7*64*8192}, v{VA_DW}',lo=g0-14,hi=g0-12))
        else: grp=grp_of(q_dma,'x',1,'x')+grp_of(q_dma,'x',2,'x')
        place(grp,pos,EV,S,V)
        if t<7:
            k=0
            for a in range(8):
                for s in range(2):
                    g=g0+(k//3)*16+7+(k%3)*2+(1 if (t==0 and k<6) else 0); EV.append((g,F(a_read(t+1,a,s),lo=g))); k+=1
            keys=f'w{t+1}'+(f'|c{t+2}' if t<6 else '')
            pre[g0+112]=[f's_waitcnt vmkey({keys}) lgkmcnt(0)']; pre[g0+113]=['s_barrier']
            if mat==0 and 1<=t<=4:
                lab=f'F_ARR{t}'
                pre[g0+113]+=[f's_lshr_b32 s{S_T}, s{S_I}, 1', f's_lshl_b32 s{S_T+1}, s{S_WAVE}, 2', f's_add_u32 s{S_T}, s{S_T}, s{S_T+1}', f's_cmp_lg_u32 s{S_T}, {t-1}', f's_cbranch_scc1 {lab}',
                                's_mov_b64 exec, 1', f's_and_b32 s{S_T}, s2, 7', f's_lshl_b32 s{S_T}, s{S_T}, 5', f'v_mov_b32 v28, s{S_T}', f'v_mov_b32 v29, 1',
                                'global_atomic_add v28, v29, s[94:95] sc1', 's_mov_b64 exec, -1', f'{lab}:']
        t0=OPT.get('touch0',1)
        if t0<=t<t0+4 and OPT['touch']:
            EV.append((g0+47,F(I(f'global_load_dword a{252+t-t0}, v0, s[{S_TB}:{S_TB+1}] {OPT["ntwq"]}',tag=('K','touch')),lo=g0+47,hi=g0+48)))
            V.append(F(f'v_add_u32 v0, s{S_TS}, v0',lo=g0+50,hi=g0+52))
        if OPT['touch']==2 and t in OPT.get('t2',(4,5)):
            j=OPT.get('t2',(4,5)).index(t)
            EV.append((g0+63,F(I(f'global_load_dword a{250+j}, v31, s[72:73] offset:{j*128}',tag=('K','touch')),lo=g0+63,hi=g0+64)))
        if t==6:
            for j,x in enumerate([f'v_add_u32 v{VB_XA}, s{S_M8}, v6', f'v_xor_b32 v{VB_XA+1}, 64, v{VB_XA}', f'v_add_u32 v{VB_XA+2}, 65536, v{VB_XA}', f'v_add_u32 v{VB_XA+3}, 65536, v{VB_XA+1}']):
                V.append(F(x,lo=g0+20,hi=g0+30))
    if OPT['conv']:
        ld,cp=conv1(0)
        g=128+14
        for x in ld:
            f=F(x,lo=g); G.append(f)
            if f.cls=='D': g+=OPT.get('cvgap',14)
        print('conv1 loads end',g)
        g=max(g,OPT.get('cvc',5*128-10))
        for x in cp: G.append(F(x,lo=g))
    V.sort(key=lambda f:f.lo)
    g0=7*128; n=len(mf)
    done={}
    for c in range(8):
        for a in range(8):
            k,b,o=tile_reg(mat,a,c); done[o]=max(done.get(o,0),g0+c*16+a*2+1)
    V7=[]
    for o in sorted(range(32),key=lambda o:done[o]):
        if o in LATE: continue
        lo=done[o]+5
        assert lo<n-1
        ops,reg=pack(o,lo,24)
        V7+=ops
        if o<OPT['nstA']: V7.append(F(kv_store(o,reg),lo=lo))
    adj=[F(f'v_add_u32 v{VB_WA+j}, {32768-mat*16384}, v{VB_WA+j}',lo=g0+104,hi=g0+110) for j in range(4)]
    rest=[f for f in V if f.lo>=g0-4]+adj; V=[f for f in V if f.lo<g0-4]
    rest.sort(key=lambda f:f.lo)
    merged=[];i=0
    for f in V7:
        while i<len(rest) and rest[i].lo<=f.lo+8: merged.append(rest[i]); i+=1
        merged.append(f)
    merged+=rest[i:]
    for j in range(len(merged)-2,-1,-1): merged[j].hi=min(merged[j].hi,merged[j+1].hi)
    V+=merged
    pre[g0+54]=['s_waitcnt vmkey(x0)']
    for k in range(8):
        g=g0+55+(k//3)*16+(k%3)*2; EV.append((g,F(x_read(0,k//2,k%2),lo=g)))
    pre[g0+112]=['s_waitcnt vmkey(wq0|x1) lgkmcnt(0)']; pre[g0+113]=['s_barrier']
    k=0
    for cc in range(2):
        for s in range(2):
            for hf in range(2):
                g=g0+114+k; EV.append((g,F(wq_read(0,cc,s,hf),lo=g))); k+=1
    EV.sort(key=lambda e:e[0]); S.sort(key=lambda f:f.lo)
    glast=G[-1].i if G else None
    code,over=schedule(mf,V,[e[1] for e in EV],S,pre,G)
    if glast:
        k=[j for j,x in enumerate(code) if x is glast][0]; ng=sum(x.kind=='mfma' for x in code[:k])
        print('conv1 ends at gap',ng); assert ng<7*128
    return code,over
LATE=(14,15,22,23,30,31)
LATEST=sorted(range(16,32),key=lambda o:(o&3,o))
SIDE=[]
SPIN=2000000
def spin(name, load, cmp_, cnt=S_T+3):
    SIDE.extend([f'{name}_S:', f's_mov_b32 s{cnt}, 0', f'{name}_L:', load, f's_add_u32 s{cnt}, s{cnt}, 1', 's_waitcnt vmcnt(0)', cmp_,
                 f's_cmp_gt_u32 s{cnt}, {SPIN}', f's_cbranch_scc1 {name}_R', f's_cbranch_vccnz {name}_L', f's_branch {name}_R'])
    return [cmp_, 's_nop 0', f's_cbranch_vccnz {name}_S', f'{name}_R:']
S_PF=3
def phaseB():
    mf=[];V=[];S=[];EV=[];pre={}
    pub=OPT['pub']
    for t in range(8):
        g0=t*64
        for cc in range(8):
            for a in range(4):
                for s in range(2):
                    W=A_W+(cc%4)*8+s*4; X=A_X+(t%2)*32+(a*2+s)*4; A=rng(*qacc(a,cc))
                    mf.append(f'{MF} {A}, a[{W}:{W+3}], a[{X}:{X+3}], {"0" if (t==0 and s==0) else A}')
        for cc in range(8):
            tt,c2=(t,cc+2) if cc<6 else (t+1,cc-6)
            if tt<8:
                for k,(s,hf) in enumerate(((0,0),(0,1),(1,0),(1,1))):
                    g=g0+cc*8+k+(2 if cc==6 else 0); EV.append((g,F(wq_read(tt,c2,s,hf),lo=g)))
        if t<7:
            for k in range(8):
                g=g0+(k//2)*8+4+(k%2)*2; EV.append((g,F(x_read(t+1,k//2,k%2),lo=g)))
            keys=f'wq{t+1}'+(f'|x{t+2}' if t<6 else '')+('|st0|arr' if t==pub else '')+('|fl' if t==OPT['pollg']+1 else '')
            pre[g0+48]=[f's_waitcnt vmkey({keys}) lgkmcnt(0)']; pre[g0+49]=['s_barrier']
        grp=[]
        if t+2<8: grp+=grp_of(q_dma,'wq',t+2,'wq')
        if t+3<8: grp+=grp_of(q_dma,'x',t+3,'x')
        pos=[g0-9,g0-3,g0-1]+[g0+5,g0+7,g0+13,g0+15,g0+21,g0+29,g0+36,g0+38,g0+44] if t>0 else [5,7,13,15,21,23,29,31,36,38,44,46]
        place(grp,pos,EV,S,V)
        tk=max(6,OPT['pollg']+2)
        ops=[]
        if t==tk: ops+=dma_ops('k',0,1)+dma_ops('v',0,1)
        if t==7: ops+=dma_ops('k',1,1)
        prev=None
        for (prs,txt),g in zip(ops,pos):
            if prs:
                if prev is None:
                    for j,x in enumerate(prs): S.append(F(x,lo=g-3+j,hi=g-2+j))
                else: prev.post=[I(x) for x in prs]
            prev=F(txt,lo=g,hi=g+1); EV.append((g,prev))
    for o in LATE:
        ops,reg=pack(o,3,0); V+=ops
    slots=[]
    for t,n in enumerate(OPT['stB']):
        slots+=[t*64+g for g in ([47,60,37,31][:n] if t<5 else [23,39,60,31,15,47][:n])]
    slots.sort()
    order=list(range(OPT['nstA'],16))+LATEST
    for o,g in zip(order,slots): EV.append((g,F(kv_store(o,R(o)[1]),lo=g)))
    phaseB.left=order[len(slots):]
    assert all(o>=16 for o in phaseB.left)
    for n in range(4,8): S.append(F(f's_mov_b32 s{n}, s{S_ST+n}',lo=20,hi=40))
    for j in range(64): V.append(F(f'v_accvgpr_write_b32 a{A_OP+j}, 0',lo=4*64+j,hi=7*64))
    for x in ['v_and_b32 v28, 7, v7','v_lshlrev_b32 v26, 12, v28','v_lshlrev_b32 v28, 5, v28','v_mov_b32 v24, 0','v_mov_b32 v25, 1',
              f'v_add_u32 v18, s{S_M8}, v{V_L16}', f'v_add_u32 v18, {QX}, v18', 'v_xor_b32 v19, 8192, v18']:
        V.append(F(x,lo=30,hi=50))
    for x in [f's_and_b32 s{S_PF}, s2, 31', f's_lshl_b32 s{S_PF}, s{S_PF}, 7', f's_add_u32 s{S_PF}, s{S_PF}, {WS_F}']: S.append(F(x,lo=30,hi=50))
    la='global_load_dword v29, v28, s[94:95] sc1'; lf=f'buffer_load_dword v27, v26, s[16:19], s{S_PF} offen sc1'
    EV.append((54,F(I(la,tag=('K','arr')),lo=54)))
    pre[pub*64+49]+=[f'buffer_store_dword v25, v24, s[16:19], s{S_FL} offen sc1']+spin('F_AW',la,'v_cmp_ne_u32 vcc, 32, v29')
    gl=OPT['pollg']*64+62
    EV.append((gl,F(I(lf,tag=('K','fl')),lo=gl)))
    pre[(OPT['pollg']+1)*64+49]+=spin('F_P1',lf,'v_cmp_gt_u32 vcc, 1, v27')
    V.sort(key=lambda f:f.lo)
    g0=7*64; tail=[]
    for u in range(4):
        for a in range(4):
            lo=g0+(2*u+1)*8+a*2+1+5
            k0,r0=qacc(a,2*u); k1,r1=qacc(a,2*u+1); ops=[]
            if k0=='a':
                ops=[f'v_accvgpr_read_b32 v{R(4+a)[1]+j}, a{r0+j}' for j in range(4)]; r0=R(4+a)[1]
            ops+=[f'v_mul_f32 v{r+j}, s{S_C}, v{r+j}' for r in (r0,r1) for j in range(4)]
            ops+=[f'v_cvt_pk_bf16_f32 v{r0+j}, v{src}, v{src+1}' for j,src in enumerate((r0,r0+2,r1,r1+2))]
            ops+=[f'v_accvgpr_write_b32 a{qreg(a,u)+j}, v{r0+j}' for j in range(4)]
            if a<2: ops.append(I(f'ds_write_b128 v18, v[{r0}:{r0+3}] offset:{(a*4+u)*1024}',tag=('W','qx',None,QX,QX+32768,True)))
            for x in ops: (V if lo<len(mf)-1 else tail).append(F(x,lo=lo))
    for j in range(len(V)-2,-1,-1): V[j].hi=min(V[j].hi,V[j+1].hi)
    EV.sort(key=lambda e:e[0]); S.sort(key=lambda f:f.lo)
    code,over=schedule(mf,V,[e[1] for e in EV],S,pre)
    code+=parse(['s_nop 7'])+[f.i for f in tail]+parse(['s_waitcnt vmkey(k0) lgkmcnt(0)'])
    return code,over
def hooks(name,iters):
    lf=f'buffer_load_dword v9, v8, s[16:19], s{S_PF} offen sc1'
    left=phaseB.left
    late=[o for o in left if (o&3)>=2][-OPT['st0']:] if OPT['st0'] else []
    early=[o for o in left if o not in late]
    for it in iters:
        if name in ('PRO','MID0'):
            if it['u']==-1:
                it['dev']=[(2+(46*k)//max(len(early),1),kv_store(o,R(o)[1])) for k,o in enumerate(early)]; it['vm']=len(early)
            if it['u']==0:
                g0=27 if name=='MID0' else 11
                it['dev']=[(g0+(56*k)//len(late)//4*4,kv_store(o,R(o)[1])) for k,o in enumerate(late)]; it['vm']=len(late)
        if it['u']==1 and name in ('L1','MID','MID0'):
            it['post_bar']=[f'buffer_store_dword v11, v10, s[16:19], s{S_FL} offen sc1']
        if (it['u']==2 and name in ('L1','MID')) or (it['u']==0 and name=='L2'):
            it['dev']=[(51,lf)]; it['post_bar']=spin(f'F_P2{name}',lf,'v_cmp_gt_u32 vcc, 2, v9')
        if it['u']==1 and name.startswith('MID'):
            g0=47 if name=='MID0' else 15
            dev=it.setdefault('dev',[]); sev=it.setdefault('sev',[]); vev=it.setdefault('vev',[])
            if OPT['conv']:
                for k in range(6):
                    dev.append((g0+4*k if name!='MID0' else 5+4*k,I(f'ds_read_b128 a[{224+4*k}:{227+4*k}], v0 offset:{k*128}',tag=('R','c1',None,SP,SP+24576,True))))
                    gs=(g0+28 if name!='MID0' else g0)+4*k
                    sev.append((gs-3,f's_movk_i32 s{S_T}, {k*4096}')); dev.append((gs,f'buffer_store_dwordx4 a[{224+4*k}:{227+4*k}], v22, s[16:19], s{S_T} offen sc1'))
            gt=g0+(56 if name!='MID0' else 28)
            for j,x in enumerate([f's_and_b32 s{S_T+1}, s{S_H}, 28', f's_and_b32 s{S_T+2}, s{S_I}, 3', f's_add_u32 s{S_T+1}, s{S_T+1}, s{S_T+2}', f's_lshl_b32 s{S_T+1}, s{S_T+1}, 17',
                                  f's_lshl_b32 s{S_T+2}, s{S_WAVE}, 15', f's_add_u32 s{S_T+1}, s{S_T+1}, s{S_T+2}', f's_and_b32 s{S_T+2}, s{S_H}, 3', f's_lshl_b32 s{S_T+2}, s{S_T+2}, 8', f's_add_u32 s{S_T+1}, s{S_T+1}, s{S_T+2}']):
                sev.append((gt-40+4*j,x))
            vev+=[(gt-3,'v_lshrrev_b32 v9, 1, v7'),(gt-3,'v_lshlrev_b32 v9, 3, v9'),(gt-2,'v_and_or_b32 v9, v7, 1, v9'),(gt-2,'v_lshlrev_b32 v9, 7, v9')]
            dev.append((gt,f'buffer_load_dword a250, v9, s[12:15], s{S_T+1} offen'))
            dev.sort(key=lambda e:e[0]); it['vmkey']=True
    if name.startswith('TAIL') or name.startswith('MID7'):
        a,b=iters[-3],iters[-2]
        ss,vv=phasey.early_setup()
        g0=47 if name.startswith('TAIL') else 31
        a.setdefault('sev',[]).extend([(g0-28+2*j,x) for j,x in enumerate(ss)]); a.setdefault('vev',[]).extend([(g0-3,x) for x in vv])
        for it,j,nn,g in ((a,0,8,g0),(b,1,7,15)):
            for n in range(nn):
                prs,x=phasey.wo_dma(j,n,True)
                it.setdefault('sev',[]).extend([(g+4*n-3+q,p) for q,p in enumerate(prs)]); it.setdefault('dev',[]).append((g+4*n,x))
            it['vmkey']=True
def att_addr():
    return [f'v_mov_b32 v{V_KA}, v{V_L16}', f's_and_b32 s{S_T}, s{S_WAVE}, 1', f's_lshl_b32 s{S_T}, s{S_T}, 14', f'v_add_u32 v{V_KA+1}, s{S_T}, v{V_L16}',
        f'v_add_u32 v{V_VA}, 65536, v{V_KA}', f'v_add_u32 v{V_VA+1}, 65536, v{V_KA+1}', f'v_mov_b32 v{V_NINF}, 0xff800000']
def skipcond(code):
    out=[];skip=None
    for x in code:
        if skip:
            if x.text==skip+':': skip=None
            continue
        if x.op.startswith('s_cbranch_scc') and x.ops[0].startswith('F_ARR'):
            skip=x.ops[0]; continue
        out.append(x)
    return out
def build():
    diag=OPT['diag']
    su=parse(setup())
    SIDE.clear()
    su,h0=vm_waits(su)
    pend=su[-4:]
    A=[]
    for mat in range(2):
        c,over=phaseA(mat)
        c2,h=vm_waits_skip(c,h0); c2,p=lgkm_waits(c2,pend); c2=fix_hazards(c2)
        print(f'A{mat} est',cycles(skipcond(c2)),'over',over); A.append((c2,h,p))
    assert [x.text for x in A[0][1][-40:]]==[x.text for x in A[1][1][-40:]] or True
    b,over=phaseB()
    b0,_=vm_waits_skip(b,A[0][1]); b1,_=vm_waits_skip(b,A[1][1])
    import re
    bb=[]
    for x,y in zip(b0,b1):
        if x.text!=y.text:
            nx=int(re.search(r'vmcnt\((\d+)\)',x.text).group(1)); ny=int(re.search(r'vmcnt\((\d+)\)',y.text).group(1))
            bb.append(x if nx<ny else y)
        else: bb.append(x)
    assert [x.text for x in A[0][2]]==[x.text for x in A[1][2]]
    bb,_=lgkm_waits(bb,A[0][2]); bb=fix_hazards(bb,A[0][0][-30:]); bb=fix_hazards(bb,A[1][0][-30:])
    print('B est',cycles(skipcond(bb)),'over',over)
    aql=after_q()[1:]
    km=[j for j,x in enumerate(aql) if isinstance(x,str) and x.startswith('v_mfma')][0]
    aql[km:km]=(conv1_lds() if OPT['conv'] else [])+phasey.wd_calc(48)
    aq,_=lgkm_waits(parse(att_addr()+aql))
    att=parse(['K2_ATT:']+set_negm()+phasey.tail_setup()+['v_and_b32 v8, 7, v7','v_lshlrev_b32 v8, 12, v8','v_mov_b32 v10, 0','v_mov_b32 v11, 2'])
    B=k2.make_blocks(hooks=hooks,final_fn=lambda: phasey.final(spin))
    yh,yc,yt,over=phasey.gemm(spin,OPT)
    hist=[x for x in B['FIN']['code'] if x.kind=='vmem']
    post,_=vm_waits(yh+yc+yt,hist); post,_=vm_reg_waits(post); post,_=lgkm_waits(post); post=fix_hazards(post,B['FIN']['code'][-30:])
    print('Y est',cycles(post),'over',over,'FIN est',cycles(B['FIN']['code']))
    nprob=0
    for i in range(8):
        for e in range(2):
            tr=[(x,0) for x in su+skipcond(A[e][0])+skipcond(bb)+aq+att]+k2.traces(B,i,e)+[(x,0) for x in post]
            nprob+=len(check([x for x,_ in tr],f'i{i} e{e}'))+len(lds_check(tr,f'i{i} e{e}'))
    nprob+=len(check(A[0][0]+bb,'withcond'))
    print('fused problems',nprob)
    out=su+parse([f's_bitcmp1_b32 s{S_WAVE}, 0','s_cbranch_scc1 F_A1'])+A[0][0]+parse(['s_branch F_B','F_A1:'])+A[1][0]+parse(['F_B:'])+bb+aq+att+k2.layout(B)
    out+=parse(['K2_POST:'])+post
    if diag:
        import stamp
        out=stamp.lane_stamps(out,23,96,98)
        k=[i for i,x in enumerate(out) if x.op.startswith('s_load')][0]
        out[k:k]=parse(['s_mov_b32 s98, 0'])+stamp.one_stamp(23,96,98,True)+stamp.one_stamp(23,96,98)
        k=[i for i,x in enumerate(out) if x.text=='K2_POST:'][0]
        out[k+1:k+1]=stamp.one_stamp(23,96,98)
        out+=parse(['s_waitcnt vmcnt(0)'])+stamp.one_stamp(23,96,98)+stamp.one_stamp(23,96,98,True)+stamp.lane_dump(23,98,S_WAVE,1,8)
    out+=parse(['s_endpgm']+SIDE+['F_END:'])
    return out
def vm_waits_skip(code,hist):
    keep=set(id(x) for x in skipcond(code))
    res,h=vm_waits([x for x in code if id(x) in keep],hist)
    it=iter(res); out=[]
    for x in code:
        out.append(next(it) if id(x) in keep else x)
    return out,h
if __name__=='__main__': build()
```

```python
import sys, importlib
from asm import I, parse
NAME='concat_heads__ssm_conv_h3__compressed_kv_cla__prompt'
def emit(kernels, path, single=False):
    ref=open('cdna_kernels/'+NAME+'.s.ref').read().split('\n')
    head=[l for l in ref if l.startswith(';') and '@launch' not in l and 'Override launch' not in l and 'grid=ceil' not in l]
    s='\n'.join(head)+'\n'
    if single:
        k=kernels[0]; k['name']=NAME+'_kernel'
        s+=f"; @launch grid=({k['grid']},1,1) block=({k['block']},1,1) lds={k['lds']}\n"
    for k in kernels:
        if not single: s+=f"; @launch kernel={k['name']} grid=({k['grid']},1,1) block=({k['block']},1,1) lds={k['lds']}\n"
    s+='.amdgcn_target "amdgcn-amd-amdhsa--gfx950"\n.text\n'
    seen=set()
    for k in kernels:
        if k['name'] in seen: continue
        seen.add(k['name'])
        s+=f".globl {k['name']}\n.p2align 8\n.type {k['name']},@function\n{k['name']}:\n"
        for x in k['code']:
            t=x.text.replace(', ',',')
            s+= (t if x.kind=='label' else t)+'\n'
        s+='  s_endpgm\n'
    s+='.p2align 8\n'+'  s_endpgm\n'*4
    s+='.section .rodata,"a"\n'
    seen=set()
    for k in kernels:
        if k['name'] in seen: continue
        seen.add(k['name'])
        s+=f""".p2align 6
.amdhsa_kernel {k['name']}
  .amdhsa_next_free_vgpr {k['vgpr']}
  .amdhsa_next_free_sgpr {k.get('sgpr',102)}
  .amdhsa_accum_offset {k['acc']}
  .amdhsa_group_segment_fixed_size 0
  .amdhsa_kernarg_size 120
  .amdhsa_user_sgpr_count 2
  .amdhsa_user_sgpr_kernarg_segment_ptr 1
  .amdhsa_system_sgpr_workgroup_id_x 1
  .amdhsa_float_denorm_mode_32 3
.end_amdhsa_kernel
"""
    open(path,'w').write(s)
    print('wrote',path,len(s),'bytes')
```

```python
from asm import I, parse, check, fix_hazards
from sched import F, schedule, lgkm_waits, cycles
from attn import *
import attn
from k1 import srd, code_warm
WS_K=0; WS_V=16<<20; WS_C=32<<20
CSCALE=0x3e0293ee
import struct, math
CSCALE=struct.unpack('<I',struct.pack('<f',math.log2(math.e)/math.sqrt(128)))[0]
S_SOX=32
S_SOW=40
S_MX=44; S_MW=45; S_C=46
S_RB=80
V_XA=8
V_WA=12
V_DX=16; V_DW=17
XB=[0,32768,65536]; WB=[131072,147456,98304]
A_X=160; A_W=224
OPT=dict(ntw='',ntx='',warm=True,stfl='')
def qacc(a,c): return 128+(c*4+a)*4
def q_dma(kind,t):
    ops=[]
    if kind=='x':
        for n in range(8):
            ops.append((I(f'buffer_load_dwordx4 v{V_DX}, s[8:11], s{S_SOX+n} offen {OPT["ntx"]} lds',tag=('W','x',t,XB[t%3],XB[t%3]+32768,False)), f's_add_u32 m0, s{S_MX}, {XB[t%3]+n*1024}'))
    else:
        for n in range(4):
            ops.append((I(f'buffer_load_dwordx4 v{V_DW}, s[12:15], s{S_SOW+n} offen {OPT["ntw"]} lds',tag=('W','wq',t,WB[t%3],WB[t%3]+16384,True)), f's_add_u32 m0, s{S_MW}, {WB[t%3]+n*1024}'))
    return ops
def q_bump(kind): return f'v_add_u32 v{V_DX}, 128, v{V_DX}' if kind=='x' else f'v_add_u32 v{V_DW}, {64*8192}, v{V_DW}'
def x_read(t,a,s):
    b=A_X+(t%2)*32+(a*2+s)*4; base=XB[t%3]
    return I(f'ds_read_b128 a[{b}:{b+3}], v{V_XA+s+(2 if base>=65536 else 0)} offset:{base%65536+a*2048}',tag=('R','x',t,base,base+32768,False))
def w_read(t,c,s,hf):
    b=A_W+(c%4)*8+s*4+2*hf
    return I(f'ds_read_b64_tr_b16 a[{b}:{b+1}], v{V_WA+c%4} offset:{WB[t%3]-98304+(c>>2)*8192+s*4096+hf*2048}',tag=('R','wq',t,WB[t%3],WB[t%3]+16384,True))

def ids():
    T=S_T
    c=[f'v_lshrrev_b32 v{V_T}, 6, v0', f'v_and_b32 v7, 63, v0', f'v_readfirstlane_b32 s{S_WAVE}, v{V_T}',
       f's_and_b32 s{S_H}, s2, 7', f's_lshl_b32 s{S_H}, s{S_H}, 2', f's_bfe_u32 s{T}, s2, 0x20003', f's_add_u32 s{S_H}, s{S_H}, s{T}',
       f's_lshr_b32 s{S_I}, s2, 5', f's_lshl_b32 s{S_W4K}, s{S_WAVE}, 12',
       f'v_lshlrev_b32 v{V_L16}, 4, v7']
    c+=[f's_sub_u32 s{T}, 15, s{S_I}', f's_lshl_b32 s{T}, s{T}, 3', f's_lshr_b32 s{T+1}, s{S_WAVE}, 1', f's_add_u32 s{T}, s{T}, s{T+1}',
        f's_and_b32 s{T+1}, s{S_WAVE}, 1', f's_lshl_b32 s{T+1}, s{T+1}, 1',
        f's_add_u32 s{S_RB}, s{T}, s{T+1}', f's_add_u32 s{S_RB+1}, s{T}, 6', f's_sub_u32 s{S_RB+1}, s{S_RB+1}, s{T+1}',
        f's_add_u32 s{S_RB+4}, s{T}, 2', f's_sub_u32 s{S_RB+4}, s{S_RB+4}, s{T+1}', f's_add_u32 s{S_RB+5}, s{T}, 4', f's_add_u32 s{S_RB+5}, s{S_RB+5}, s{T+1}',
        f's_lshl_b32 s{T}, s{S_I}, 3', f's_add_u32 s{S_RB+2}, s{T}, s{S_WAVE}', f's_add_u32 s{S_RB+3}, s{S_RB+2}, 4']
    return c

def q_setup():
    T=V_T+10; L='v7'; S=S_T
    c=[]
    for n in range(8):
        c+=[f's_lshl_b32 s{S_SOX+n}, s{S_RB+(n>>1)}, 14']
        if n&1: c+=[f's_add_u32 s{S_SOX+n}, s{S_SOX+n}, 8192']
    c+=[f's_lshr_b32 s{S}, s{S_WAVE}, 1', f's_lshl_b32 s{S}, s{S}, 18']
    for n in range(4): c+=[f's_add_u32 s{S_SOW+n}, s{S}, {(16*(n&1)+4*(n>>1))*8192}']
    c+=[f's_lshl_b32 s{S_MX}, s{S_WAVE}, 13',
        f's_and_b32 s{S}, s{S_WAVE}, 1', f's_lshl_b32 s{S}, s{S}, 13', f's_lshr_b32 s{S+1}, s{S_WAVE}, 1', f's_lshl_b32 s{S+1}, s{S+1}, 12', f's_add_u32 s{S_MW}, s{S}, s{S+1}',
        f's_mov_b32 s{S_C}, {CSCALE:#x}']
    c+=[f'v_lshrrev_b32 v{T}, 3, {L}', f'v_and_b32 v{T+1}, 6, v{T}', f'v_xor_b32 v{T+1}, v{T+1}, {L}', f'v_and_b32 v{T+1}, 7, v{T+1}',
        f'v_lshlrev_b32 v{T+1}, 4, v{T+1}', f'v_lshl_add_u32 v{V_DX}, v{T}, 10, v{T+1}']
    c+=[f'v_lshrrev_b32 v{T+1}, 2, v{T}', f'v_lshlrev_b32 v{T+1}, 3, v{T+1}', f'v_and_b32 v{T+2}, 3, v{T}', f'v_add_u32 v{T+1}, v{T+1}, v{T+2}',
        f'v_lshlrev_b32 v{V_DW}, 13, v{T+1}',
        f'v_bfe_u32 v{T+1}, {L}, 1, 2', f'v_lshrrev_b32 v{T+2}, 4, {L}', f'v_xor_b32 v{T+1}, v{T+1}, v{T+2}',
        f'v_lshl_add_u32 v{V_DW}, v{T+1}, 5, v{V_DW}', f'v_and_b32 v{T+1}, 1, {L}', f'v_lshl_add_u32 v{V_DW}, v{T+1}, 4, v{V_DW}',
        f's_lshl_b32 s{S}, s{S_H}, 8', f's_and_b32 s{S+1}, s{S_WAVE}, 1', f's_lshl_b32 s{S+1}, s{S+1}, 7', f's_add_u32 s{S}, s{S}, s{S+1}',
        f'v_add_u32 v{V_DW}, s{S}, v{V_DW}']
    return c
def q_setup2():
    T=V_T+10; L='v7'
    c=[f'v_and_b32 v{T}, 15, {L}', f'v_lshrrev_b32 v{T+1}, 4, {L}', f'v_and_b32 v{T+2}, 6, v{T}', f'v_xor_b32 v{T+1}, v{T+1}, v{T+2}',
       f'v_lshlrev_b32 v{T+1}, 4, v{T+1}', f'v_lshl_add_u32 v{V_XA}, v{T}, 7, v{T+1}', f'v_add_u32 v{V_XA}, s{S_MX}, v{V_XA}',
       f'v_xor_b32 v{V_XA+1}, 64, v{V_XA}', f'v_add_u32 v{V_XA+2}, 65536, v{V_XA}', f'v_add_u32 v{V_XA+3}, 65536, v{V_XA+1}']
    c+=[f'v_lshrrev_b32 v{T}, 2, {L}', f'v_lshlrev_b32 v{T}, 7, v{T}', f'v_and_b32 v{T+1}, 3, {L}', f'v_lshl_add_u32 v{T}, v{T+1}, 3, v{T}',
        f'v_bfe_u32 v{T+1}, {L}, 3, 2', f'v_lshl_add_u32 v{T}, v{T+1}, 5, v{T}', f'v_add_u32 v{T}, 98304, v{T}']
    for c4 in range(4): c.append(f'v_xor_b32 v{V_WA+c4}, {c4*32}, v{T}')
    c+=[f'v_mov_b32 v{V_KA}, v{V_L16}', f's_and_b32 s{S_T}, s{S_WAVE}, 1', f's_lshl_b32 s{S_T}, s{S_T}, 14', f'v_add_u32 v{V_KA+1}, s{S_T}, v{V_L16}',
        f'v_add_u32 v{V_VA}, 65536, v{V_KA}', f'v_add_u32 v{V_VA+1}, 65536, v{V_KA+1}', f'v_mov_b32 v{V_NINF}, 0xff800000']
    return c
def kv_offsets():
    T=S_T
    return [f's_lshl_b32 s{T}, s{S_H}, 19', f's_add_u32 s{T}, s{T}, s{S_W4K}', f's_sub_u32 s{S_KO}, s{T}, 16384', f's_add_u32 s{S_VO}, s{S_KO}, {WS_V}']
def flat(ops):
    c=[]
    for pre,t in ops: c+=list(pre)+[t]
    return c
QX=98304

def qproj():
    c=[]
    for kind,t in (('x',0),('w',0),('x',1),('w',1),('x',2)):
        if t>0: c.append(q_bump(kind))
        for d,m in q_dma(kind,t): c+=[m,'s_nop 0',d]
    nw=0
    if OPT['warm']:
        w,nw=code_warm('K2_END','K2_PC','v24','v25',S_T,65536); c+=w
    c+=q_setup2()+kv_offsets()
    c+=[f's_lshl_b32 s{S_T}, s{S_WAVE}, 13', f's_add_u32 s{S_T}, s{S_T}, {QX}', f'v_add_u32 v18, s{S_T}, v{V_L16}', f'v_xor_b32 v19, 8192, v18']
    c+=[f's_waitcnt vmcnt({24+nw})']
    for a in range(4):
        for s in range(2): c.append(x_read(0,a,s))
    c+=[f's_waitcnt vmcnt({12+nw}) lgkmcnt(0)','s_barrier']
    for cc in range(2):
        for s in range(2):
            for hf in range(2): c.append(w_read(0,cc,s,hf))
    pro=parse(c); pend=pro[-8:]
    mf=[];V=[];S=[];EV=[];pre={}
    for t in range(8):
        g0=t*64
        for cc in range(8):
            for a in range(4):
                for s in range(2):
                    W=A_W+(cc%4)*8+s*4; X=A_X+(t%2)*32+(a*2+s)*4; A=qacc(a,cc)
                    C='0' if (t==0 and s==0) else f'v[{A}:{A+3}]'
                    mf.append(f'{MF} v[{A}:{A+3}], a[{W}:{W+3}], a[{X}:{X+3}], {C}')
        for cc in range(8):
            tt,c2=(t,cc+2) if cc<6 else (t+1,cc-6)
            if tt<8:
                for k,(s,hf) in enumerate(((0,0),(0,1),(1,0),(1,1))):
                    g=g0+cc*8+k+(2 if cc==6 else 0)
                    EV.append((g,F(w_read(tt,c2,s,hf),lo=g)))
        if t<7:
            for k in range(8):
                g=g0+(k//2)*8+4+(k%2)*2
                EV.append((g,F(x_read(t+1,k//2,k%2),lo=g)))
            vm = 12 if t<5 else (4+8 if t==5 else 8+4)
            pre[g0+48]=[f's_waitcnt vmcnt({vm}) lgkmcnt(0)']; pre[g0+49]=['s_barrier']
        grp=[]
        if t+2<8: grp+=[('w',)+o for o in q_dma('w',t+2)]
        if t+3<8: grp+=[('x',)+o for o in q_dma('x',t+3)]
        pos=[g0-9,g0-3,g0-1]+[g0+5,g0+7,g0+13,g0+15,g0+21,g0+29,g0+36,g0+38,g0+44] if t>0 else [5,7,13,15,21,23,29,31,36,38,44,46]
        prev=None; seen=set()
        for (kind,d,m),g in zip(grp,pos):
            if kind not in seen:
                seen.add(kind); V.append(F(q_bump(kind),lo=max(g-3,0) if prev is None else prevg,hi=g-1))
            if prev is None: S.append(F(m,lo=g-2,hi=g-1))
            else: prev.post=[I(m)]
            prev=F(d,lo=g); prevg=g; EV.append((g,prev))
        if t in (6,7):
            ops = (dma_ops('k',0,1)+dma_ops('v',0,1)) if t==6 else dma_ops('k',1,1)
            prev=None
            for (prs,txt),g in zip(ops,pos):
                if prs:
                    if prev is None:
                        for j,x in enumerate(prs): S.append(F(x,lo=g-3+j,hi=g-2+j))
                    else: prev.post=[I(x) for x in prs]
                prev=F(txt,lo=g); EV.append((g,prev))
    pre[5*64+48]=['s_waitcnt vmcnt(4) lgkmcnt(0)']
    pre[6*64+48]=['s_waitcnt vmcnt(8) lgkmcnt(0)']
    for j in range(64): V.append(F(f'v_accvgpr_write_b32 a{A_OP+j}, 0',lo=5*64+j,hi=7*64))
    V.sort(key=lambda f:f.lo)
    g0=7*64; tail=[]
    for u in range(4):
        for a in range(4):
            lo=g0+(2*u+1)*8+a*2+1+5
            r0=qacc(a,2*u); r1=qacc(a,2*u+1)
            ops=[f'v_mul_f32 v{r+j}, s{S_C}, v{r+j}' for r in (r0,r1) for j in range(4)]
            ops+=[f'v_cvt_pk_bf16_f32 v{r0+j}, v{src}, v{src+1}' for j,src in enumerate((r0,r0+2,r1,r1+2))]
            ops+=[f'v_accvgpr_write_b32 a{qreg(a,u)+j}, v{r0+j}' for j in range(4)]
            if a<2: ops.append(I(f'ds_write_b128 v18, v[{r0}:{r0+3}] offset:{(a*4+u)*1024}',tag=('W','qx',None,QX,QX+32768,True)))
            for o in ops: (V if lo<len(mf)-1 else tail).append(F(o,lo=lo))
    EV.sort(key=lambda e:e[0]); S.sort(key=lambda f:f.lo)
    code,over=schedule(mf,V,[e[1] for e in EV],S,pre)
    code+=parse(['s_nop 7'])+[f.i for f in tail]
    code,_=lgkm_waits(code,pend)
    print('qproj est cycles',cycles(code),'overflow',over)
    return pro,code

def xlane(reg,tmp,op):
    return [f'v_mov_b32 v{tmp}, v{reg}','s_nop 1',f'v_permlane32_swap_b32 v{tmp}, v{reg}',f'{op} v{reg}, v{reg}, v{tmp}',
            f'v_mov_b32 v{tmp}, v{reg}','s_nop 1',f'v_permlane16_swap_b32 v{tmp}, v{reg}',f'{op} v{reg}, v{reg}, v{tmp}']
def xlane_multi(regs,tmps,op):
    c=[]
    for sw in ('v_permlane32_swap_b32','v_permlane16_swap_b32'):
        c+=[f'v_mov_b32 v{t}, v{r}' for r,t in zip(regs,tmps)]
        if len(regs)<3: c+=['s_nop 1']
        c+=[f'{sw} v{t}, v{r}' for r,t in zip(regs,tmps)]
        c+=[f'{op} v{r}, v{r}, v{t}' for r,t in zip(regs,tmps)]
    return c
def masks():
    T=V_T
    c=[f'v_and_b32 v{T}, 15, v7', f'v_lshrrev_b32 v{T+1}, 4, v7', f'v_lshlrev_b32 v{T+1}, 2, v{T+1}', f'v_sub_u32 v{T}, v{T}, v{T+1}',
       f's_lshl_b32 s{S_T}, s{S_WAVE}, 4', f'v_add_u32 v{T+1}, s{S_T}, v{T}',
       f's_lshr_b32 s{S_T}, s{S_WAVE}, 1', f's_lshl_b32 s{S_T}, s{S_T}, 4', f'v_add_u32 v{T+2}, s{S_T}, v{T}']
    for kt in range(4):
        for r in range(4):
            sm=S_MK+(kt*4+r)*2; c.append(f'v_cmp_le_i32 s[{sm}:{sm+1}], {16*kt+r}, v{T+1}')
    for hf in range(2):
        for r in range(4):
            sm=S_ML+(hf*4+r)*2; c.append(f'v_cmp_le_i32 s[{sm}:{sm+1}], {16*hf+r}, v{T+2}')
    return c
P1=lambda par,kind='plain',first=(): Step(1,par,kind,first=first)
P2=lambda par,kind='plain',e=None: Step(2,par,kind,e)
def k0reads():
    st=P1(0)
    return [I(kread(st,0,0,ds,0),tag=('R','k',0,0,32768,True)) for ds in range(4)]
def after_q():
    c=['s_waitcnt vmcnt(8) lgkmcnt(0)','s_barrier']
    c+=k0reads()
    for a in range(2):
        for u in range(4): c.append(I(f'ds_read_b128 {rng("a",qreg(4+a,u))}, v19 offset:{(a*4+u)*1024}',tag=('R','qx',None,QX,QX+32768,True)))
    c+=masks()
    for b in range(6):
        for ds in range(4):
            C='0' if ds==0 else rng('v',V_NM+b*4)
            c.append(f'{MF} {rng("v",V_NM+b*4)}, {rng("a",A_K+ds*4)}, {rng("a",qreg(b,ds))}, {C}')
    c+=[f's_cmp_eq_u32 s{S_RB+2}, 0']
    for r in range(4):
        c.append(f's_cselect_b64 s[{S_T+0}:{S_T+1}], s[{S_MK+2*r}:{S_MK+2*r+1}], -1')
        c.append(f'v_cndmask_b32 v{V_NM+8+r}, v{V_NINF}, v{V_NM+8+r}, s[{S_T}:{S_T+1}]')
    for b in range(6):
        x=V_NM+b*4
        c+=[f'v_max_f32 v{x}, v{x}, v{x+1}', f'v_max3_f32 v{x}, v{x}, v{x+2}, v{x+3}']
    c+=xlane_multi([V_NM+b*4 for b in range(6)],[V_NM+b*4+1 for b in range(6)],'v_max_f32')
    return c
def set_negm():
    c=[]
    for b in range(6):
        x=V_NM+b*4
        c+=[f'v_sub_f32 v{x+r}, 0, v{x}' for r in (3,2,1,0)]
    c+=[f'v_mov_b32 v{V_L+b}, 0' for b in range(6)]
    return c
OX=0
LX=131072
def short_epi():
    T=V_T
    c=xlane_multi([V_L+2,V_L+3],[T,T+1],'v_add_f32')
    c+=[f'v_rcp_f32 v{T}, v{V_L+2}', f'v_rcp_f32 v{T+1}, v{V_L+3}']
    c+=store_ctx(2,T)+store_ctx(3,T+1)
    return c
S_CO=86
def store_ctx(b,rinv):
    c=[]
    base=(V_OO+b*32) if b<2 else (V_OS+(b-2)*32)
    for u in range(4):
        r=base+u*8
        c+=[f'v_mul_f32 v{r+j}, v{rinv}, v{r+j}' for j in range(8)]
        c+=[f'v_cvt_pk_bf16_f32 v{r+j}, v{r+2*j}, v{r+2*j+1}' for j in range(4)]
        c+=[f'buffer_store_dwordx4 v[{r}:{r+3}], v{V_L16}, s[{SRD_WS}:{SRD_WS+3}], s{S_CO+b} offen offset:{u*1024}{OPT["stfl"]}']
    return c
def tail_extras(ulast):
    def extraV(V,iters,n):
        lo=0
        for it in iters:
            for (b,dt),g in it['o_last'].items():
                if b in (2,3): lo=max(lo,g+5)
        ops=[x for x in short_epi() if not x.startswith('s_nop')]
        g0=iters[-2]['g0']; g1=iters[-2]['g1']
        if lo<=g0 and OPT.get('early_short'):
            ex=[F(x,lo=g0+(g1-g0+16)*k//len(ops),hi=g0+(g1-g0+16)*k//len(ops)+2) for k,x in enumerate(ops)]
            out=[];i=0
            for f in V:
                while i<len(ex) and ex[i].hi<=f.hi: out.append(ex[i]); i+=1
                out.append(f)
            return out+ex[i:]
        lo=max(lo,iters[-1]['g0'])
        return V+[F(x,lo=min(lo,n-1)) for x in ops]
    def extraD(iters,n):
        it=iters[-1]; ev=[]
        for b in (4,5):
            for dt in range(8):
                g=it['o_last'].get((b,dt),it['g0']-4)+5
                x=A_OP+((b-4)*8+dt)*4
                f=F(I(f'ds_write_b128 v{V_T+4}, a[{x}:{x+3}] offset:{((b-4)*8+dt)*1024}',tag=('W','ox',None,0,32768,True)),lo=min(g,n-1),hi=g+2)
                f.late = g>n-1
                ev.append((g,f))
        tail_extras.late=[f.i for g,f in sorted(ev,key=lambda e:e[0]) if f.late]
        return [(g,f) for g,f in ev if not f.late]
    return extraV,extraD
def final():
    T=V_T
    c=[]
    c+=[f'v_max3_f32 v{T+2}, v{V_L}, v{V_L+1}, v{V_L+2}', f'v_max3_f32 v{T+3}, v{V_L+3}, v{V_L+4}, v{V_L+5}',
        f'v_add_f32 v{T+2}, v{T+2}, v{T+3}',
        I(f'ds_write_b64 v{T+6}, v[{V_L+4}:{V_L+5}]',tag=('W','lx',None,LX,LX+8192,True)),
        f'v_cmp_nle_f32 vcc, v{T+2}, v{T+7}',
        f'v_mov_b32 v{T+3}, s{S_WAVE}', f'v_lshlrev_b32 v{T+3}, 2, v{T+3}',
        f's_cmp_lg_u64 vcc, 0', f's_cselect_b32 s{S_T}, 1, 0', f'v_mov_b32 v{T+2}, s{S_T}',
        f'v_add_u32 v{T+3}, {LX+4096}, v{T+3}',
        I(f'ds_write_b32 v{T+3}, v{T+2}',tag=('W','lx',None,LX,LX+8192,True)),
        's_waitcnt lgkmcnt(0)','s_barrier']
    c+=[f'v_xor_b32 v{T+6}, 512, v{T+6}', f'v_mov_b32 v{T+3}, {LX+4096}',
        I(f'ds_read_b64 v[{V_L+4}:{V_L+5}], v{T+6}',tag=('R','lx',None,LX,LX+8192,True)),
        I(f'ds_read_b128 v[{V_S}:{V_S+3}], v{T+3}',tag=('R','lx',None,LX,LX+8192,True))]
    for j in range(16):
        c.append(I(f'ds_read_b128 v[{V_P+4*j}:{V_P+4*j+3}], v{T+5} offset:{j*1024}',tag=('R','ox',None,OX,OX+65536,True)))
        if j==11: c+=['s_waitcnt lgkmcnt(12)', f'v_or3_b32 v{V_S}, v{V_S}, v{V_S+1}, v{V_S+2}', f'v_or_b32 v{V_S}, v{V_S}, v{V_S+3}',
                      f'v_add_f32 v{V_L}, v{V_L}, v{V_L+4}', f'v_add_f32 v{V_L+1}, v{V_L+1}, v{V_L+5}', f'v_readfirstlane_b32 s{S_T}, v{V_S}']
    c+=xlane_multi([V_L,V_L+1],[T,T+1],'v_add_f32')
    c+=[f'v_rcp_f32 v{T}, v{V_L}', f'v_rcp_f32 v{T+1}, v{V_L+1}']
    c+=[f's_andn2_b32 s{S_T}, s{S_T}, s{S_PASS}', 's_cbranch_scc1 K2_SLOW']
    for b in range(2):
        sc=store_ctx(b,T+b)
        for u in range(4):
            r=V_OO+b*32+u*8
            c+=[f'v_add_f32 v{r+j}, v{r+j}, v{V_P+b*32+u*8+j}' for j in range(8)]
            c+=sc[u*13:(u+1)*13]
    return c
def tail_setup():
    T=V_T
    c=[f's_lshl_b32 s{S_T}, s{S_WAVE}, 14', f'v_add_u32 v{T+4}, s{S_T}, v{V_L16}', f'v_xor_b32 v{T+5}, 16384, v{T+4}',
       f's_lshl_b32 s{S_T}, s{S_WAVE}, 9', f's_add_u32 s{S_T}, s{S_T}, {LX}', f'v_lshrrev_b32 v{T+6}, 1, v{V_L16}', f'v_add_u32 v{T+6}, s{S_T}, v{T+6}',
       f'v_mov_b32 v{T+7}, 0x5d800000']
    for b in range(4):
        c+=[f's_lshl_b32 s{S_CO+b}, s{S_RB+b}, 17', f's_lshl_b32 s{S_T}, s{S_H}, 12', f's_add_u32 s{S_CO+b}, s{S_CO+b}, s{S_T}', f's_add_u32 s{S_CO+b}, s{S_CO+b}, {WS_C}']
    return c
def slow():
    T=V_P
    c=['K2_SLOW:','s_waitcnt vmcnt(0) lgkmcnt(0)','s_barrier', f's_mov_b32 s{S_PASS}, 1']+[f's_mov_b32 s{n}, 0x40000000' for n in range(4,8)]+['v_mov_b32 v22, 0x40000000','v_mov_b32 v0, 0']+masks()
    for b in range(6): c+=[f'v_mov_b32 v{V_NM+b*4}, v{V_NINF}']
    c+=[f'v_and_b32 v{T}, 15, v7', f'v_lshrrev_b32 v{T+1}, 4, v7', f'v_lshlrev_b32 v{T+1}, 2, v{T+1}', f'v_sub_u32 v{T}, v{T}, v{T+1}']
    for b in range(6): c+=[f's_lshl_b32 s{S_T}, s{S_RB+b}, 4', f'v_add_u32 v{T+2+b}, s{S_T}, v{T}']
    c+=[f's_lshl_b32 s{S_KO}, s{S_H}, 19', f's_sub_u32 s{S_CNT}, 16, s{S_I}', f's_lshl_b32 s{S_CNT}, s{S_CNT}, 3', 'K2_SLOWL:']
    for ds in range(4): c.append(f'buffer_load_dwordx4 {rng("a",A_K+ds*4)}, v{V_L16}, s[{SRD_WS}:{SRD_WS+3}], s{S_KO} offen offset:{ds*1024}{attn.DMAFL}')
    c.append('s_waitcnt vmcnt(0)')
    for b in range(6):
        for ds in range(4):
            C='0' if ds==0 else rng('v',T+16+b*4)
            c.append(f'{MF} {rng("v",T+16+b*4)}, {rng("a",A_K+ds*4)}, {rng("a",qreg(b,ds))}, {C}')
    c.append('s_nop 7')
    for b in range(6):
        for r in range(4):
            c+=[f'v_cmp_le_i32 vcc, {r}, v{T+2+b}','s_nop 1',f'v_cndmask_b32 v{T+16+b*4+r}, v{V_NINF}, v{T+16+b*4+r}, vcc', f'v_max_f32 v{V_NM+b*4}, v{V_NM+b*4}, v{T+16+b*4+r}']
        c+=[f'v_subrev_u32 v{T+2+b}, 16, v{T+2+b}']
    c+=[f's_add_u32 s{S_KO}, s{S_KO}, 4096', f's_sub_u32 s{S_CNT}, s{S_CNT}, 1', f's_cmp_lg_u32 s{S_CNT}, 0', 's_cbranch_scc1 K2_SLOWL']
    c+=xlane_multi([V_NM+b*4 for b in range(6)],[V_NM+b*4+1 for b in range(6)],'v_max_f32')
    c+=[f'v_accvgpr_write_b32 a{A_OP+j}, 0' for j in range(64)]
    c+=kv_offsets()
    for kind,u in (('k',0),('v',0),('k',1)):
        for pre,t in dma_ops(kind,u,1): c+=list(pre)+[t]
    c+=['s_waitcnt vmcnt(8)','s_barrier']+k0reads()+['s_waitcnt lgkmcnt(0)','s_branch K2_ATT']
    return c

def make_blocks(final_fn=None, hooks=None):
    final_fn = final_fn or final
    B={}
    ALL=(0,1,2,3)
    def mk(name,iters,entry,**kw):
        if hooks: hooks(name,iters)
        code,pend,carry,over=block(iters,entry,name=name,**kw)
        B[name]=dict(code=code,pend=pend,carry=carry,over=over)
        return B[name]
    def shift(carry,d):
        out=[]
        for pre,x in carry:
            t=list(x.tag); t[2]+=d; out.append((pre,I(x.text,tag=tuple(t))))
        return out
    d11=[('k',1),('v',1)]; d21=[('k',2),('v',1)]; d22=[('k',2),('v',2)]
    b=mk('PRO',[dict(u=-1,qk=P1(0),pv=None,nk=P1(1),nv=P1(0),dma=d11),
                dict(u=0,qk=P1(1),pv=P1(0,first=ALL),nk=P1(0),nv=P1(1),dma=d11)],None)
    c1=b['carry']; p1=b['pend']
    loopS=[f's_sub_u32 s{S_CNT}, s{S_CNT}, 1', f's_cmp_lg_u32 s{S_CNT}, 0']
    b=mk('L1',[dict(u=1,qk=P1(0),pv=P1(1),nk=P1(1),nv=P1(0),dma=d11,carry=c1),
               dict(u=2,qk=P1(1),pv=P1(0),nk=P1(0),nv=P1(1),dma=d11)],p1,loopS=loopS)
    assert b['pend']==p1 and [x[1].text for x in b['carry']]==[x[1].text for x in c1]
    b=mk('MID',[dict(u=1,qk=P1(0,'A'),pv=P1(1),nk=P1(1,'B'),nv=P1(0,'A'),dma=d21,carry=c1),
                dict(u=2,qk=P1(1,'B'),pv=P1(0,'A'),nk=P2(0),nv=P1(1,'B'),dma=d22),
                dict(u=3,qk=P2(0),pv=P1(1,'B'),nk=P2(1),nv=P2(0),dma=d22)],p1)
    c2=shift(b['carry'],-4); p2=b['pend']
    b=mk('MID0',[dict(u=-1,qk=P1(0,'A'),pv=None,nk=P1(1,'B'),nv=P1(0,'A'),dma=d21),
                dict(u=0,qk=P1(1,'B'),pv=P1(0,'A',first=ALL),nk=P2(0),nv=P1(1,'B'),dma=d22),
                dict(u=1,qk=P2(0),pv=P1(1,'B'),nk=P2(1),nv=P2(0),dma=d22)],None)
    assert b['pend']==p2
    b=mk('L2',[dict(u=0,qk=P2(1),pv=P2(0),nk=P2(0),nv=P2(1),dma=d22,carry=c2),
               dict(u=1,qk=P2(0),pv=P2(1),nk=P2(1),nv=P2(0),dma=d22)],p2,loopS=loopS)
    assert b['pend']==p2
    for e in range(2):
        L=lambda: P2(0,'L',e)
        eV,eD=tail_extras(16)
        mk(f'TAIL{e}',[dict(u=0,qk=P2(1),pv=P2(0),nk=L(),nv=P2(1),dma=[('v',2)],carry=c2),
                       dict(u=1,qk=L(),pv=P2(1),nk=None,nv=L(),tailpv=1),
                       dict(u=2,qk=None,pv=L(),bar=False)],p2,extraV=eV,extraD=eD)
        B[f'TAIL{e}']['code']+=parse(['s_nop 3']+tail_extras.late)
        mk(f'MID7{e}',[dict(u=1,qk=P1(0,'A'),pv=P1(1),nk=P1(1,'B'),nv=P1(0,'A'),dma=d21,carry=c1),
                dict(u=2,qk=P1(1,'B'),pv=P1(0,'A'),nk=L(),nv=P1(1,'B'),dma=[('v',2)]),
                dict(u=3,qk=L(),pv=P1(1,'B'),nk=None,nv=L(),tailpv=1),
                dict(u=4,qk=None,pv=L(),bar=False)],p1,extraV=eV,extraD=eD)
        B[f'MID7{e}']['code']+=parse(['s_nop 3']+tail_extras.late)
    def tailds(code):
        _,p=lgkm_waits(code); return p
    pp1=tailds(B['L1']['code']); pp2=tailds(B['L2']['code'])
    for nm,pe in (('PRO',[]),('MID0',[]),('L1',pp1),('MID',pp1),('MID70',pp1),('MID71',pp1),('L2',pp2),('TAIL0',pp2),('TAIL1',pp2)):
        B[nm]['code'],_=lgkm_waits(B[nm]['code'],pe)
        B[nm]['code']=fix_hazards(B[nm]['code'])
        c=B[nm]['code']
        print(f'{nm}: mfma {sum(x.kind=="mfma" for x in c)} insts {len(c)} overflow {B[nm]["over"]} est {cycles(c)}')
    fin,_=lgkm_waits(parse(final_fn())); B['FIN']=dict(code=fix_hazards(fin))
    return B
def traces(B,i,e):
    tr=[]
    add=lambda nm,base: tr.extend((x,base) for x in B[nm]['code'])
    if i==0: add('MID0',0); u=2
    else:
        add('PRO',0); u=1
        for _ in range(i-1): add('L1',u-1); u+=2
        if i==7: add(f'MID7{e}',u-1); u=None
        else: add('MID',u-1); u+=3
    if u is not None:
        for _ in range(6-i): add('L2',u); u+=2
        assert u==14
        add(f'TAIL{e}',u)
    add('FIN',0)
    return tr
def layout(B):
    endw=['s_branch K2_FIN']
    out=parse([f's_cmp_eq_u32 s{S_I}, 0','s_cbranch_scc1 K2_MID0'])
    out+=B['PRO']['code']
    out+=parse([f's_sub_u32 s{S_CNT}, s{S_I}, 1', f's_cmp_eq_u32 s{S_CNT}, 0','s_cbranch_scc1 K2_MID','.p2align 3','K2_L1:'])+B['L1']['code']+parse(['s_cbranch_scc1 K2_L1'])
    out+=parse([f's_cmp_eq_u32 s{S_I}, 7','s_cbranch_scc1 K2_MID7','K2_MID:'])+B['MID']['code']
    out+=parse(['K2_P2:', f's_sub_u32 s{S_CNT}, 6, s{S_I}', f's_cmp_eq_u32 s{S_CNT}, 0','s_cbranch_scc1 K2_TAIL','.p2align 3','K2_L2:'])+B['L2']['code']+parse(['s_cbranch_scc1 K2_L2'])
    out+=parse(['K2_TAIL:', f's_bitcmp1_b32 s{S_WAVE}, 0','s_cbranch_scc1 K2_TAIL1'])+B['TAIL0']['code']+parse(endw)
    side=parse(['K2_MID0:'])+B['MID0']['code']+parse(['s_branch K2_P2'])
    side+=parse(['K2_MID7:', f's_bitcmp1_b32 s{S_WAVE}, 0','s_cbranch_scc1 K2_MID71'])+B['MID70']['code']+parse(endw)
    side+=parse(['K2_MID71:'])+B['MID71']['code']+parse(endw)
    side+=parse(slow())
    out+=side+parse(['K2_TAIL1:'])+B['TAIL1']['code']+parse(['K2_FIN:'])+B['FIN']['code']
    return out
```

```python
from asm import I, parse
from sched import F, schedule, lgkm_waits, vm_waits, vm_reg_waits, cycles
from attn import *
import k2
from k2 import S_RB, S_CO, xlane_multi, WS_C
WS_U=48<<20
WS_P=64<<20
WS_F=60<<20
S_FL=99
WJ=[131072,32768,65536,0]
V_WD=0
S_WM=32; S_WO=33
S_HP=36
S_MB=4
ST=' sc1'
def wo_dma(j,n,early):
    sm,so,hp=(4,5,6+j) if early else (S_WM,S_WO,S_HP+j)
    lo=WJ[j]
    return ([f's_add_u32 m0, s{sm}, {lo+n*1024}', f's_add_u32 s{so}, s{hp}, {n*8192}'],
            I(f'buffer_load_dwordx4 v{V_WD}, s[12:15], s{so} offen lds',tag=('W',f'wo{j}' if not (j==1 and n==7) else 'wo1',None,lo,lo+32768,True)))
def early_setup():
    T=S_T
    s=[f's_and_b32 s{T}, s{S_WAVE}, 1', f's_lshl_b32 s{T}, s{T}, 14', f's_lshr_b32 s4, s{S_WAVE}, 1', 's_lshl_b32 s4, s4, 13', f's_add_u32 s4, s4, s{T}',
       f's_lshl_b32 s6, s{S_H}, 17', f's_add_u32 s{T}, s{S_H}, 1', f's_and_b32 s{T}, s{T}, 3', f's_and_b32 s7, s{S_H}, 28', f's_add_u32 s7, s7, s{T}', 's_lshl_b32 s7, s7, 17']
    v=['v_accvgpr_read_b32 v0, a248']
    return s,v
def wd_calc(T):
    S=S_T; L='v7'
    return [f'v_lshrrev_b32 v{T}, 3, {L}', f'v_lshlrev_b32 v{T}, 10, v{T}', f'v_bfe_u32 v{T+1}, {L}, 1, 2', f'v_lshrrev_b32 v{T+2}, 4, {L}', f'v_xor_b32 v{T+1}, v{T+1}, v{T+2}',
        f'v_lshl_add_u32 v{T}, v{T+1}, 5, v{T}', f'v_and_b32 v{T+1}, 1, {L}', f'v_lshl_add_u32 v{T}, v{T+1}, 4, v{T}',
        f's_and_b32 s{S}, s{S_H}, 3', f's_lshl_b32 s{S}, s{S}, 8', f's_and_b32 s{S+1}, s{S_WAVE}, 1', f's_lshl_b32 s{S+1}, s{S+1}, 7', f's_add_u32 s{S}, s{S}, s{S+1}',
        f's_lshr_b32 s{S+1}, s{S_WAVE}, 1', f's_lshl_b32 s{S+1}, s{S+1}, 16', f's_add_u32 s{S}, s{S}, s{S+1}', f'v_add_u32 v{T}, s{S}, v{T}', f'v_accvgpr_write_b32 a248, v{T}',
        's_mov_b32 s12, s90', 's_and_b32 s13, s91, 0xffff']
def tail_setup():
    T=V_T; S=S_T
    c=[f's_lshr_b32 s{S}, s{S_WAVE}, 1', f's_mul_i32 s{S+1}, s{S}, 98304', f's_and_b32 s{S+2}, s{S_WAVE}, 1', f's_lshl_b32 s{S+2}, s{S+2}, 14', f's_add_u32 s{S+1}, s{S+1}, s{S+2}',
       f'v_add_u32 v{T+4}, s{S+1}, v{V_L16}', f'v_xor_b32 v{T+5}, 16384, v{T+4}',
       f's_lshl_b32 s{S}, s{S}, 13', f's_add_u32 s{S}, s{S}, s{S+2}', f's_add_u32 s{S}, s{S}, {32768+7168}', f'v_lshrrev_b32 v{T+6}, 1, v{V_L16}', f'v_add_u32 v{T+6}, s{S}, v{T+6}',
       f'v_mov_b32 v{T+7}, 0x5d800000']
    for b in range(4):
        c+=[f's_lshl_b32 s{S_CO+b}, s{S_RB+b}, 17', f's_lshl_b32 s{S}, s{S_H}, 12', f's_add_u32 s{S_CO+b}, s{S_CO+b}, s{S}', f's_add_u32 s{S_CO+b}, s{S_CO+b}, {WS_C}']
    return c
oxW=lambda: ('W','ox',None,0,32768,True)
def flag(val,vd,va): return [f'v_mov_b32 v{vd}, {val}', f'buffer_store_dword v{vd}, v{va}, s[16:19], s{S_FL} offen sc1']
def own(b,u): return (V_OO+b*32+u*8)
def acc(b,c):
    k=b*8+c
    return (V_P+k*4) if b<2 else (132+((b-2)*8+c)*8)
def peer(b,j,u): return (96 if b<2 else 0)+((b&1)*12+(j-1)*4+u)*4
VW=24
def w_read(j,c,u,hf,slot):
    b=192+(slot%4)*16+u*4+2*hf
    v=VW+(c&3)+(4 if j==2 else 0)
    off=(32768 if j==1 else 0)+(c>>2)*16384+u*4096+hf*2048
    return I(f'ds_read_b64_tr_b16 a[{b}:{b+1}], v{v} offset:{off}',tag=('R',f'wo{j}',None,WJ[j],WJ[j]+32768,True))

def final(spin):
    T=V_T; S=S_T
    lxW=('W','lx',None,163840,163841,True); lxR=('R','lx',None,163840,163841,True)
    c=['s_load_dwordx4 s[64:67], s[0:1], 32', f'v_max3_f32 v{T+2}, v{V_L}, v{V_L+1}, v{V_L+2}', f'v_max3_f32 v{T+3}, v{V_L+3}, v{V_L+4}, v{V_L+5}', f'v_add_f32 v{T+2}, v{T+2}, v{T+3}',
       I(f'ds_write_b64 v{T+6}, v[{V_L+4}:{V_L+5}]',tag=lxW),
       f'v_cmp_nle_f32 vcc, v{T+2}, v{T+7}', f'v_and_b32 v{T+3}, 0xfffffe00, v{T+6}', f'v_and_b32 v{T}, 1, v7', f'v_lshlrev_b32 v{T}, 14, v{T}',
       f's_cmp_lg_u64 vcc, 0', f's_cselect_b32 s{S}, 1, 0', f'v_mov_b32 v{T+2}, s{S}',
       I(f'ds_write_b32 v{T+3}, v{T+2} offset:512',tag=lxW),
       f'v_bfe_u32 v{T+1}, v7, 1, 1', f'v_lshl_add_u32 v{T}, v{T+1}, 13, v{T}', f'v_xor_b32 v{T+6}, 16384, v{T+6}', f'v_mov_b32 v{T+3}, 0',
       's_waitcnt vmcnt(0) lgkmcnt(0)','s_barrier',
       I(f'ds_read_b32 v{V_S}, v{T} offset:{32768+7168+512}',tag=lxR),
       I(f'ds_read_b64 v[{V_L+4}:{V_L+5}], v{T+6}',tag=lxR)]
    for j in range(12): c.append(I(f'ds_read_b128 v[{V_P+4*j}:{V_P+4*j+3}], v{T+5} offset:{j*1024}',tag=('R','ox',None,0,32768,True)))
    c+=['s_waitcnt lgkmcnt(12)', f'v_cmp_ne_u32 vcc, 0, v{V_S}', f'v_add_f32 v{V_L}, v{V_L}, v{V_L+4}', f'v_add_f32 v{V_L+1}, v{V_L+1}, v{V_L+5}']
    for j in range(12,16): c.append(I(f'ds_read_b128 v[{V_P+4*j}:{V_P+4*j+3}], v{T+5} offset:{j*1024}',tag=('R','ox',None,0,32768,True)))
    c+=[f's_cmp_lg_u64 vcc, 0', f's_cselect_b32 s{S}, 1, 0', f's_andn2_b32 s{S}, s{S}, s{S_PASS}', 's_cbranch_scc1 K2_SLOW']
    c+=flag(3,T+2,T+3)
    c+=[f's_mov_b32 s{S_WM}, s4', f's_mov_b32 s{S_HP}, s6', f's_mov_b32 s{S_HP+1}, s7']
    for j in (2,3): c+=[f's_add_u32 s{S}, s{S_H}, {j}', f's_and_b32 s{S}, s{S}, 3', f's_and_b32 s{S+1}, s{S_H}, 28', f's_add_u32 s{S}, s{S}, s{S+1}', f's_lshl_b32 s{S_HP+j}, s{S}, 17']
    c+=xlane_multi([V_L,V_L+1],[T,T+1],'v_add_f32')
    c+=[f'v_rcp_f32 v{T}, v{V_L}', f'v_rcp_f32 v{T+1}, v{V_L+1}']
    d2=[wo_dma(2,n,False) for n in range(8)]
    k=0
    for b in range(2):
        sc=k2.store_ctx(b,T+b)
        for u in range(4):
            r=V_OO+b*32+u*8
            c+=d2[k][0]+[d2[k][1]]; k+=1
            c+=[f'v_add_f32 v{r+j}, v{r+j}, v{V_P+b*32+u*8+j}' for j in range(8)]
            seg=sc[u*13:(u+1)*13]; seg[-1]=I(seg[-1],tag=('K','cl')); c+=seg
    c+=[f'v_lshrrev_b32 v{T}, 2, v7', f'v_lshlrev_b32 v{T}, 7, v{T}', f'v_and_b32 v{T+1}, 3, v7', f'v_lshl_add_u32 v{T}, v{T+1}, 3, v{T}',
        f'v_bfe_u32 v{T+1}, v7, 3, 2', f'v_lshl_add_u32 v{T}, v{T+1}, 5, v{T}', f'v_add_u32 v{T}, 131072, v{T}']
    for c4 in range(4): c.append(f'v_xor_b32 v{VW+c4}, {c4*32}, v{T}')
    return c

CS=4160; HB=4*CS+512; CHB=HB+4096; CV0=98304
def gemm(spin,OPT):
    T=V_T; S=S_T
    mf=[];V=[];Sq=[];EV=[];pre={};G=[]
    groups=[(0,c,(2,3,0,1)) for c in range(8)]
    for blks in ((2,3),(0,1)):
        for c in range(8):
            for j in (1,2,3): groups.append((j,c,blks))
    gstart=[]; done={}
    for k,(j,c,blks) in enumerate(groups):
        gstart.append(len(mf))
        for b in blks:
            for u in range(4):
                W=192+(k%4)*16+u*4; A=acc(b,c)
                X=rng('v',own(b,u)) if j==0 else rng('a',peer(b,j,u))
                mf.append(f'{MF} v[{A}:{A+3}], a[{W}:{W+3}], {X}, {"0" if (j==0 and u==0) else f"v[{A}:{A+3}]"}')
            done[(b,c)]=len(mf)-1
    NG=len(mf)
    gY1=128-22
    head=[w_read(0,0,u,hf,0) for u in range(4) for hf in range(2)]
    for k in range(1,len(groups)):
        j,c,blks=groups[k]
        if k<=7: lo=gstart[k-1]; step=1
        elif k==8: lo=gY1+2; step=1
        elif k==9: lo=gY1+11; step=1
        else: lo=gstart[k-2]; step=1
        for q in range(8): EV.append((lo+q*step,F(w_read(j,c,q//2,q%2,k),lo=lo+q*step,hi=lo+q*step+(0 if k==7 else 3))))
    for c4 in range(4):
        V.append(F(f'v_subrev_u32 v{VW+4+c4}, 65536, v{VW+c4}',lo=2,hi=40))
    for c4 in range(4): pre.setdefault(gY1+1,[]).append(f'v_subrev_u32 v{VW+c4}, 131072, v{VW+c4}')
    pre[1]=['s_barrier']
    dm=[wo_dma(3,n,False) for n in range(8)]+[wo_dma(1,7,False)]
    def dmas(lst,gaps):
        prev=None
        for (prs,x),g in zip(lst,gaps):
            if prev is None:
                for q,p in enumerate(prs): Sq.append(F(p,lo=g-3+q,hi=g-2+q))
            else: prev.post=[I(p) for p in prs]
            prev=F(x,lo=g,hi=g+2); EV.append((g,prev))
    dmas(dm,[9,11,13,15,25,27,29,31,41])
    S_PC=40; S_PP=41; S_PV=42; S_CX=44
    sc=[f's_and_b32 s{S_PC}, s2, 0xe7', f's_lshl_b32 s{S_PC}, s{S_PC}, 7', f's_add_u32 s{S_PC}, s{S_PC}, {WS_F}',
        f's_and_b32 s{S_PP}, s2, 0xf8', f's_lshl_b32 s{S_PP}, s{S_PP}, 7', f's_add_u32 s{S_PP}, s{S_PP}, {WS_F}',
        f's_and_b32 s{S_PV}, s2, 7', f's_lshl_b32 s{S_PV}, s{S_PV}, 7', f's_add_u32 s{S_PV}, s{S_PV}, {WS_F}']
    for b in (2,3,0,1):
        for j in (1,2,3):
            r=S_CX+b*3+j-1
            sc+=[f's_lshr_b32 s{r}, s{S_HP+j}, 5', f's_lshl_b32 s{S+2}, s{S_RB+b}, 17', f's_add_u32 s{r}, s{r}, s{S+2}', f's_add_u32 s{r}, s{r}, {WS_C}']
    S_PO=56
    sc+=[f's_and_b32 s{S+1}, s{S_H}, 3', f's_lshl_b32 s{S+1}, s{S+1}, 15', f's_and_b32 s{S+2}, s2, 7', f's_lshl_b32 s{S+2}, s{S+2}, 10', f's_add_u32 s{S+1}, s{S+1}, s{S+2}', f's_add_u32 s{S+1}, s{S+1}, {WS_P}']
    for b in range(4): sc+=[f's_lshl_b32 s{S_PO+b}, s{S_RB+b}, 17', f's_add_u32 s{S_PO+b}, s{S_PO+b}, s{S+1}']
    presc=sc[:3]+[f'v_and_b32 v32, 3, v7','v_lshlrev_b32 v32, 10, v32','v_mov_b32 v34, 0']
    for x in sc[3:]: G.append(F(x,lo=0))
    lc=f'buffer_load_dword v33, v32, s[16:19], s{S_PC} offen sc1'
    g1=OPT.get('yp1',8)
    EV.append((g1,F(I(lc,tag=('K','p3')),lo=g1,hi=g1)))
    gc=OPT.get('yc1',44)
    pre.setdefault(gc,[]).extend(['s_waitcnt vmkey(p3)']+spin('F_Y3',lc,'v_cmp_gt_u32 vcc, 3, v33',43))
    def cload(b,j,u): return f'buffer_load_dwordx4 {rng("a",peer(b,j,u))}, v{V_L16}, s[16:19], s{S_CX+b*3+j-1} offen offset:{u*1024} sc1'
    lst=[(b,j,u) for j in (1,2,3) for b in (2,3) for u in range(4)]
    free=[g for g in range(gc+1,gY1-1) if (g%16)>=8]
    for q,(b,j,u) in enumerate(lst):
        g=free[q] if q<len(free) else gY1+20+(q-len(free))*2
        EV.append((g,F(cload(b,j,u),lo=g,hi=g+2)))
    pre.setdefault(gY1-1,[]).append('s_waitcnt vmkey(wo1|wo2|wo3|cl) lgkmcnt(0)')
    pre.setdefault(gY1,[]).extend(['s_barrier']+flag(4,35,34))
    g2=OPT.get('yp2',128+56); gc2=g2+OPT.get('yd',40)
    EV.append((g2,F(I(lc,tag=('K','p4')),lo=g2,hi=g2)))
    pre.setdefault(gc2,[]).extend(['s_waitcnt vmkey(p4)']+spin('F_Y4',lc,'v_cmp_gt_u32 vcc, 4, v33',43))
    lst=[(b,j,u) for j in (1,2,3) for b in (0,1) for u in range(4)]
    for q,(b,j,u) in enumerate(lst):
        g=gc2+1+q*3
        EV.append((g,F(cload(b,j,u),lo=g,hi=g+1)))
    tailV=[]
    pairs=sorted([(done[(b,2*u+1)],b,u) for b in range(4) for u in range(4)])
    for gd,b,u in pairs:
        r0=acc(b,2*u); r1=acc(b,2*u+1); lo=gd+5
        ops=[f'v_cvt_pk_bf16_f32 v{r0+j}, v{src}, v{src+1}' for j,src in enumerate((r0,r0+2,r1,r1+2))]
        ops+=[f's_add_u32 s{S}, s{S_PO+b}, {u*8192}', I(f'buffer_store_dwordx4 v[{r0}:{r0+3}], v{V_L16}, s[16:19], s{S} offen sc1',tag=('K','ps' if b>=2 else 'pl'))]
        for x in ops: V.append(F(x,lo=lo,hi=lo+10))
    st=60
    e_=st+2
    cs=[f's_and_b32 s{st}, s2, 7', f's_lshl_b32 s{st}, s{st}, 5', f's_lshr_b32 s{st+1}, s2, 3', f's_add_u32 s{st}, s{st}, s{st+1}',
        f's_lshr_b32 s{st+3}, s{S_WAVE}, 1', f's_mul_i32 s{st+1}, s{st+3}, {CHB}', f's_add_u32 s{st+1}, s{st+1}, {CV0}', f's_and_b32 s{e_}, s{S_WAVE}, 1',
        's_mov_b32 s8, s16','s_mov_b32 s9, s17', f's_mul_i32 s68, s{st}, 24576', f's_add_u32 s68, s68, {WS_U}', f's_add_u32 s69, s68, s{S_W4K}', 's_add_u32 s10, s69, 4096',
        f's_lshl_b32 s70, s{st}, 2', 'v_mov_b32 v60, s70', 'global_load_dword v60, v60, s[66:67]',
        's_and_b32 s65, s65, 0xffff', f's_mov_b32 s66, {512*4096}', 's_mov_b32 s67, 0x20000',
        f's_lshl_b32 s70, s{st}, 13', f's_lshl_b32 s71, s{S_WAVE}, 11', 's_add_u32 s70, s70, s71',
        f's_mul_i32 s71, s{e_}, {CS}', f's_add_u32 s71, s71, s{st+1}', f's_lshl_b32 s72, s{e_}, 11', f's_add_u32 s72, s72, s{st+1}', 's_add_u32 s73, s69, 4',
        'v_and_b32 v36, 31, v7','v_lshlrev_b32 v36, 10, v36']
    A=40
    cs+=[f'v_mov_b32 v{A+e}, 0' for e in range(4)]
    cs+=[f'v_and_b32 v{A+4}, 3, v7', f'v_mul_u32_u24 v{A+4}, {CS}, v{A+4}', f'v_add_u32 v{A+4}, 4096, v{A+4}', f'v_bfe_u32 v{A+5}, v7, 2, 1', f'v_lshl_add_u32 v{A+4}, v{A+5}, 4, v{A+4}',
         f'v_add_u32 v{A+5}, {4*CS-512}, v{V_L16}', 'v_cmp_gt_u32 s[74:75], 32, v7', f'v_and_b32 v{A+6}, 3, v7', f'v_sub_u32 v{A+6}, 3, v{A+6}', f'v_cndmask_b32 v{A+4}, v{A+5}, v{A+4}, s[74:75]', f'v_add_u32 v{A+4}, s{st+1}, v{A+4}',
         f'v_mul_u32_u24 v{A+6}, {CS}, v{A+6}', f'v_lshrrev_b32 v{A+5}, 5, v7', f'v_lshlrev_b32 v{A+7}, 2, v{A+5}', f'v_bfe_u32 v48, v7, 2, 2', f'v_add_u32 v{A+7}, v{A+7}, v48',
         f'v_bfe_u32 v48, v7, 4, 1', f'v_lshlrev_b32 v49, 1, v48', f'v_sub_u32 v{A+7}, v49, v{A+7}', f'v_add_u32 v{A+7}, 39, v{A+7}', f's_lshl_b32 s76, s{e_}, 5', f'v_subrev_u32 v{A+7}, s76, v{A+7}',
         f'v_lshl_add_u32 v{A+6}, v{A+7}, 3, v{A+6}', f'v_add_u32 v{A+6}, s{st+1}, v{A+6}',
         f'v_and_b32 v{A+7}, 15, v7', f'v_sub_u32 v{A+7}, v{A+7}, v{A+5}', f'v_lshlrev_b32 v{A+7}, 5, v{A+7}', f'v_lshl_add_u32 v{A+7}, v48, 4, v{A+7}',
         f's_lshl_b32 s76, s{e_}, 8', f's_sub_u32 s76, s{st+1}, s76', f's_add_u32 s76, s76, {HB-192}', f'v_add_u32 v{A+7}, s76, v{A+7}']
    for x in cs: G.append(F(x,lo=40))
    tW=('W','cv',None,CV0,CV0+2*CHB,True); tR=('R','cv',None,CV0,CV0+2*CHB,True)
    lv=f'buffer_load_dword v37, v36, s[16:19], s{S_PV} offen sc1'
    g3=OPT.get('yp3',128+10); gc3=g3+OPT.get('yd',40)
    EV.append((g3,F(I(lv,tag=('K','pv')),lo=g3,hi=g3)))
    dm=[]
    for q in range(2):
        for n in range(4):
            dm.append(([f's_add_u32 m0, s71, {q*2*CS}'] if n==0 else [], I(f'buffer_load_dwordx4 v{V_L16}, s[8:11], s{69 if q==0 else 73} offen offset:{n*1024} sc1 lds',tag=tW)))
    for n in range(2): dm.append(([f's_add_u32 m0, s72, {HB}'] if n==0 else [], I(f'buffer_load_dwordx4 v{V_L16}, s[64:67], s70 offen offset:{n*1024} lds',tag=tW)))
    gd0=OPT.get('ycv',128+190)
    pre.setdefault(gd0-5,[]).extend(['s_waitcnt vmkey(pv)']+spin('F_YV',lv,'v_cmp_gt_u32 vcc, 3, v37',43))
    dmas(dm,[gd0+4*q for q in range(10)])
    EV.append((gd0+2,F(I(f'ds_write_b128 v{A+4}, v[{A}:{A+3}]',tag=tW),lo=gd0+2,hi=gd0+3)))
    qa=['v_and_b32 v50, 3, v7','v_lshlrev_b32 v50, 1, v50','v_lshrrev_b32 v51, 5, v7','v_add_u32 v50, v50, v51','v_bfe_u32 v51, v7, 2, 2','v_lshl_add_u32 v50, v51, 3, v50',
        'v_sub_u32 v50, 31, v50','v_lshlrev_b32 v50, 4, v50','v_lshl_add_u32 v50, v48, 12, v50',
        f's_lshl_b32 s77, s{S_WAVE}, 10', 's_sub_u32 s77, s68, s77', f's_add_u32 s77, s77, {16384+3072}']
    for x in qa: G.append(F(x,lo=40))
    gq=gd0+44
    for n in range(2): EV.append((gq+4*n,F(f'buffer_load_dwordx4 v[{52+4*n}:{55+4*n}], v50, s[16:19], s77 offen offset:{512-512*n} sc1',lo=gq+4*n,hi=gq+4*n+1)))
    gY2=OPT.get('yb2',NG-40)
    pre.setdefault(gY2-1,[]).append('s_waitcnt vmkey(ps|cv) lgkmcnt(0)')
    pre.setdefault(gY2,[]).extend(['s_barrier']+flag(5,35,34))
    CA=0
    def fa(rr,j): return (rr%2)*64+j*4
    def fb(rr,m): return (32+m*4) if rr%2==0 else (96+m*4)
    def ra(rr,j,h): b=fa(rr,j)+2*h; return I(f'ds_read_b64 a[{b}:{b+1}], v{A+6} offset:{(59-8*j-rr)*64+8*h}',tag=tR)
    def rb(rr,m): b=fb(rr,m); return I(f'ds_read_b128 a[{b}:{b+3}], v{A+7} offset:{512*m+(3-rr)*64}',tag=tR)
    ACC=own(2,0)
    for rr in range(4):
        g0=len(mf)
        for n in range(8):
            for j in range(n+1):
                d=ACC+4*n
                mf.append(f'{MF} v[{d}:{d+3}], {rng("a",fa(rr,j))}, {rng("a",fb(rr,n-j))}, {"0" if (rr==0 and j==0) else f"v[{d}:{d+3}]"}')
        rds=[]
        for j in range(8): rds+=[ra(rr,j,0),ra(rr,j,1),rb(rr,j)]
        lo=(NG-17) if rr==0 else (g0-36+(10 if rr==1 else 2))
        for q,x in enumerate(rds): EV.append((lo+q,F(x,lo=lo+q,hi=lo+q+2)))
    NT=len(mf)
    lp=f'buffer_load_dword v33, v38, s[16:19], s{S_PP} offen sc1'
    S_RR=44
    rs=['v_and_b32 v38, 7, v7','v_lshlrev_b32 v38, 7, v38',
        f's_and_b32 s{S+1}, s2, 7', f's_lshl_b32 s{S+2}, s{S_I}, 3', f's_add_u32 s78, s{S+2}, s{S+1}', f's_sub_u32 s79, 120, s{S+2}', f's_add_u32 s79, s79, s{S+1}',
        f's_and_b32 s{S+1}, s{S_H}, 3', f's_lshl_b32 s{S+2}, s{S+1}, 15', f's_lshl_b32 s{S+3}, s{S_WAVE}, 13', f's_add_u32 s{S+2}, s{S+2}, s{S+3}', f's_add_u32 s{S+2}, s{S+2}, {WS_P}']
    for q in range(2): rs+=[f's_lshl_b32 s{S_RR+q}, s{78+q}, 17', f's_add_u32 s{S_RR+q}, s{S_RR+q}, s{S+2}', f's_add_u32 s{S_RR+2+q}, s{S_RR+q}, 4096']
    rs+=[f's_lshl_b32 s{S+1}, s{S+1}, 8', f's_lshl_b32 s{S+3}, s{S_WAVE}, 6', f's_add_u32 s{S+1}, s{S+1}, s{S+3}', f's_add_u32 s{S+1}, s{S+1}, 1024']
    for q in range(2): rs+=[f's_lshl_b32 s{S_RR+4+q}, s{78+q}, 15', f's_add_u32 s{S_RR+4+q}, s{S_RR+4+q}, s{S+1}']
    rs+=['s_mov_b32 s12, s92','s_and_b32 s13, s93, 0xffff',
         'v_and_b32 v39, 15, v7','v_lshlrev_b32 v39, 11, v39','v_lshl_add_u32 v39, v48, 5, v39','v_lshrrev_b32 v51, 5, v7','v_lshl_add_u32 v39, v51, 4, v39']
    for x in rs: G.append(F(x,lo=gY2-60))
    g5=NG+OPT.get('yp5',30); gc5=g5+OPT.get('yd',40)
    EV.append((g5,F(I(lp,tag=('K','p5')),lo=g5,hi=g5)))
    pre.setdefault(gc5,[]).extend(['s_waitcnt vmkey(p5|pl)','s_barrier']+flag(6,35,34)+spin('F_Y5',lp,'v_cmp_gt_u32 vcc, 5, v33',43))
    RB=128
    def pload(q,x): return f'buffer_load_dwordx4 v[{RB+q*32+4*x}:{RB+q*32+4*x+3}], v{V_L16}, s[16:19], s{S_RR+q+(2 if x>=4 else 0)} offen offset:{(x&3)*1024} sc1'
    for x in range(8): EV.append((gc5+2+2*x,F(pload(0,x),lo=gc5+2+2*x,hi=gc5+4+2*x)))
    g6=NT-4
    EV.append((g6,F(I(lp,tag=('K','p6')),lo=g6,hi=g6)))
    EV.sort(key=lambda e:e[0]); Sq.sort(key=lambda f:f.lo); V.sort(key=lambda f:f.lo)
    for j in range(len(V)-2,-1,-1): V[j].hi=min(V[j].hi,V[j+1].hi)
    marks=[(G[6+24-1].i,gc),(G[len(sc)-4].i,128),(G[len(sc)-3+len(cs)-1].i,g3),(G[len(sc)-3+len(cs)+len(qa)-1].i,gq),(G[-1].i,g5)]
    code,over=schedule(mf,V,[e[1] for e in EV],Sq,pre,G)
    for x,lim in marks:
        k=[j for j,y in enumerate(code) if y is x][0]; ng=sum(y.kind=='mfma' for y in code[:k])
        assert ng<=lim,(x.text,ng,lim)
    def reduce(q):
        b=RB+q*32; O=64+q*16; c=[]
        for x in range(8):
            for d in range(4):
                r=b+4*x+d
                if x==0: c+=[f'v_lshlrev_b32 v{O+2*d}, 16, v{r}', f'v_and_b32 v{O+2*d+1}, 0xffff0000, v{r}']
                else: c+=[f'v_lshlrev_b32 v{O+8}, 16, v{r}', f'v_and_b32 v{r}, 0xffff0000, v{r}', f'v_add_f32 v{O+2*d}, v{O+2*d}, v{O+8}', f'v_add_f32 v{O+2*d+1}, v{O+2*d+1}, v{r}']
        c+=[f'v_cvt_pk_bf16_f32 v{O+d}, v{O+2*d}, v{O+2*d+1}' for d in range(4)]
        c+=['s_nop 1', f'v_permlane16_swap_b32 v{O}, v{O+2}', f'v_permlane16_swap_b32 v{O+1}, v{O+3}',
            f'buffer_store_dwordx4 v[{O}:{O+3}], v39, s[12:15], s{S_RR+4+q} offen']
        return c
    xW=('W','cx',None,0,32768,True); xR=('R','cx',None,0,32768,True)
    t=[f's_lshl_b32 s{S}, s{S_WAVE}, 13', f'v_add_u32 v40, s{S}, v{V_L16}', f's_lshl_b32 s{S}, s{S_WAVE}, 11', f'v_add_u32 v41, s{S}, v{V_L16}',
       'v_and_b32 v42, 15, v7','v_lshlrev_b32 v42, 2, v42','v_lshrrev_b32 v43, 4, v7','v_add_u32 v42, v42, v43',
       f's_lshl_b32 s{S}, s{S_WAVE}, 7', f'v_add_u32 v42, s{S}, v42',
       'v_lshlrev_b32 v44, 13, v42', f's_lshl_b32 s{S}, s{st}, 2', f'v_add_u32 v44, s{S}, v44',
       f'v_sub_u32 v42, {511-64}, v42','v_lshlrev_b32 v42, 3, v42', f'v_add_u32 v42, {CV0}, v42']
    for n in range(8): t.append(I(f'ds_write_b128 v40, v[{ACC+4*n}:{ACC+4*n+3}] offset:{n*1024}',tag=xW))
    for n in range(2):
        for ch in range(2): t.append(I(f'ds_read_b64 v[{96+4*n+2*ch}:{97+4*n+2*ch}], v42 offset:{ch*CHB+512-512*n}',tag=tR))
    t+=['s_waitcnt lgkmcnt(0)','s_barrier']
    for n in range(2):
        for w in range(4): t.append(I(f'ds_read_b128 v[{192+(n*4+w)*4}:{195+(n*4+w)*4}], v41 offset:{w*8192+n*1024}',tag=xR))
    t+=['s_waitcnt vmkey(p6)']+spin('F_Y6',lp,'v_cmp_gt_u32 vcc, 6, v33',43)
    for x in range(8): t.append(pload(1,x))
    t+=reduce(0)
    t+=['v_and_b32 v47, 0xffff0000, v60','v_lshlrev_b32 v46, 16, v60']
    lo=lambda d,s: f'v_lshlrev_b32 v{d}, 16, v{s}'
    hi=lambda d,s: f'v_and_b32 v{d}, 0xffff0000, v{s}'
    for n in range(2):
        for r in range(4):
            for ch in range(2):
                y=192+(n*4+2*ch)*4+r; ur=3-r
                t+=[f'v_add_f32 v{y}, v{y}, v{y+4}', (lo if ur%2==0 else hi)(104,96+4*n+2*ch+ur//2), f'v_fmac_f32 v{y}, v104, v{46+ch}',
                    (lo if ch==0 else hi)(104,52+4*n+r), f'v_mul_f32 v{y}, v{y}, v104']
            y=192+n*16+r
            t+=[f'v_cvt_pk_bf16_f32 v{y}, v{y}, v{y+8}', f's_mov_b32 s{S}, {n*256*2048+(r>>1)*4096}', f'buffer_store_dword v{y}, v44, s[12:15], s{S} offen offset:{(r&1)*2048}']
    t+=reduce(1)
    return parse(presc+head),code,parse(t),over
```

```python
from asm import I, TRANS
import re

class F:
    def __init__(self, text, lo=0, hi=10**9, post=None):
        self.i = I(text) if isinstance(text,str) else text
        k = self.i.kind
        self.cls = {'valu':'V','ds':'D','vmem':'D'}.get(k,'S')
        self.cost = 2 if (self.i.op in TRANS or self.cls=='D') else 1
        self.lo=lo; self.hi=hi
        self.post = [I(p) for p in (post or [])]

def schedule(mf, V=(), D=(), S=(), pre=None, G=()):
    V=list(V); D=list(D); S=list(S); G=list(G); pre = pre or {}
    out=[]; over=0
    n=len(mf)
    for g in range(n):
        out.append(I(mf[g]) if isinstance(mf[g],str) else mf[g])
        used=0
        for t in pre.get(g,[]):
            x=I(t) if isinstance(t,str) else t
            out.append(x); used+= 0 if x.kind=='label' else (2 if x.kind in('ds','vmem') else 1)
            if x.kind=='valu' and used==1: used=2
        last = (g==n-1)
        ddue = bool(D) and D[0].hi<=g
        while S and S[0].lo<=g and ((used<1 and not ddue) or S[0].hi<=g or last):
            f=S.pop(0); out.append(f.i); used+=1
        placedD=False
        if V and V[0].cls=='D' and V[0].lo<=g and used<=1:
            f=V.pop(0); out.append(f.i); used+=2; placedD=True
        vneed = bool(V) and V[0].lo<=g
        vbig = vneed and V[0].cost==2
        while D and D[0].lo<=g and ((not placedD and used<=1 and ((used==0 and not vbig) or not vneed)) or D[0].hi<=g or last):
            f=D.pop(0); out.append(f.i); used+=2; placedD=True
            for p in f.post: out.append(p); used+=1
        while G and G[0].cls=='S' and G[0].lo<=g and used==0:
            f=G.pop(0); out.append(f.i); used+=1
        if G and G[0].cls=='D' and G[0].lo<=g and used<=1 and not vneed and out[-1].kind!='valu':
            f=G.pop(0); out.append(f.i); used+=2
        if used==0: used=1
        while V and V[0].lo<=g and ((V[0].cls!='D' and used+V[0].cost<=3) or V[0].hi<=g or last):
            f=V.pop(0); out.append(f.i); used+=f.cost
        while G and G[0].lo<=g and ((G[0].cls!='D' and used+G[0].cost<=3) or last):
            f=G.pop(0); out.append(f.i); used+=f.cost
        while S and S[0].lo<=g and used<3:
            f=S.pop(0); out.append(f.i); used+=1
        if used>3: over+=used-3
    assert not V and not D and not S and not G, (len(V),len(D),len(S),len(G))
    return out, over

def lgkm_waits(code, pending=()):
    out=[]; pend=list(pending)
    for x in code:
        if x.op=='s_waitcnt':
            m=re.search(r'lgkmcnt\((\d+)\)',x.text)
            if m:
                n=int(m.group(1))
                while len(pend)>n: pend.pop(0)
            out.append(x); continue
        touch=set(x.rd)|set(x.wr)
        last=-1
        for k,p in enumerate(pend):
            if set(p.wr)&touch: last=k
        if last>=0:
            need=pend[last]
            ins=len(out); cnt=len(pend)-1-last
            j=len(out)-1; c=cnt; gaps=0; best=None
            while j>=0 and out[j] is not need and gaps<3:
                y=out[j]
                if y.kind=='label' or y.op=='s_barrier' or y.op.startswith('s_cbranch'): break
                if y.kind=='mfma':
                    nxt = out[j+1] if j+1<len(out) else x
                    if nxt.kind in ('valu','mfma'):
                        best=(j+1,c); break
                    gaps+=1
                if y.kind=='ds': c-=1
                j-=1
            if best is None: best=(ins,cnt)
            p_,c_=best
            c_=min(c_,15)
            out.insert(p_, I(f's_waitcnt lgkmcnt({c_})'))
            pend=pend[last+1:]
        out.append(x)
        if x.kind=='ds': pend.append(x)
    return out, pend

def cycles(code):
    t=0; mfree=0; vfree=0; prev=None
    for x in code:
        if x.kind=='label': continue
        if x.kind=='mfma':
            t=max(t,mfree,vfree); mfree=t+4*x.passes(); vfree=t+8; t+=4
        elif x.kind=='valu':
            t=max(t,vfree); t+= 8 if x.op in TRANS else 4
        elif x.kind in('ds','vmem'):
            if prev is not None and prev.kind=='valu': t+=4
            t+=8
        else:
            t+=4*x.states()
        prev=x
    return max(t,mfree)

def vm_waits(code, pending=()):
    out=[]; hist=list(pending)
    for x in code:
        if x.op=='s_waitcnt' and 'vmkey(' in x.text:
            m=re.search(r'vmkey\(([^)]*)\)',x.text); keys=set(m.group(1).split('|'))
            last=-1
            for k,p in enumerate(hist):
                if vkey(p) in keys: last=k
            assert last>=0,(x.text)
            n=min(len(hist)-1-last,63)
            out.append(I(x.text.replace(m.group(0),f'vmcnt({n})'))); continue
        out.append(x)
        if x.kind=='vmem': hist.append(x)
    return out,hist
def vkey(x):
    t=x.tag
    if not t: return None
    if t[0]=='W': return f'{t[1]}{t[2] if t[2] is not None else ""}'
    if t[0]=='K': return t[1]
    return None

def vm_reg_waits(code, pending=()):
    out=[]; pend=list(pending)
    for x in code:
        if x.op=='s_waitcnt':
            m=re.search(r'vmcnt\((\d+)\)',x.text)
            if m:
                n=int(m.group(1))
                while len(pend)>n: pend.pop(0)
            out.append(x); continue
        touch=set(x.rd)|set(x.wr); last=-1
        for k,p in enumerate(pend):
            if set(p.wr)&touch: last=k
        if last>=0:
            out.append(I(f's_waitcnt vmcnt({min(len(pend)-1-last,63)})')); pend=pend[last+1:]
        out.append(x)
        if x.kind=='vmem': pend.append(x)
    return out,pend
```

```python
from asm import I, parse
class Stamper:
    def __init__(self, sbase=64, maxn=16):
        self.b=sbase; self.n=0; self.maxn=maxn
    def stamp(self):
        assert self.n<self.maxn
        r=self.b+2*self.n; self.n+=1
        return I(f's_memtime s[{r}:{r+1}]')
def auto_stamp(code, sbase, start_n, maxn):
    out=[]; n=start_n
    for k,x in enumerate(code):
        if x.op=='s_waitcnt' and 'lgkmcnt(0)' in x.text and k+1<len(code) and code[k+1].op=='s_barrier' and n<maxn:
            out.append(I(f's_memtime s[{sbase+2*n}:{sbase+2*n+1}]')); n+=1
        out.append(x)
    return out,n
def dump(sbase, n, swave, ws_lo, vt=0, kid=0):
    c=['s_waitcnt vmcnt(0) lgkmcnt(0)', 's_load_dwordx2 s[4:5], s[0:1], 112', 's_waitcnt lgkmcnt(0)',
       's_and_b32 s5, s5, 0xffff','s_mov_b32 s6, 0x10000000','s_mov_b32 s7, 0x20000',
       f's_lshl_b32 s3, s2, 3', f's_add_u32 s3, s3, s{swave}', 's_lshl_b32 s3, s3, 8', f's_add_u32 s3, s3, {(200<<20)+kid*(1<<20)}',
       f'v_mov_b32 v{vt}, 0']
    for k in range(n):
        c+=[f'v_mov_b32 v{vt+1}, s{sbase+2*k}', f'buffer_store_dword v{vt+1}, v{vt}, s[4:7], s3 offen offset:{4*k}']
    c+=['s_waitcnt vmcnt(0)']
    return parse(c)

REAL=False
def lane_stamps(code, vreg, stmp, scnt):
    out=[]; armed=False
    for k,x in enumerate(code):
        if x.op=='s_waitcnt' and 'lgkmcnt(0)' in x.text and not code[k-1].op.startswith('s_mem') and any(y.op=='s_barrier' for y in code[k+1:k+12]):
            out.append(I(f'{"s_memrealtime" if REAL else "s_memtime"} s[{stmp}:{stmp+1}]')); armed=True
        out.append(x)
        if x.op=='s_barrier' and armed:
            out+=parse([f's_cselect_b32 s{stmp+1}, 1, 0', f's_lshl_b64 exec, 1, s{scnt}', f'v_mov_b32 v{vreg}, s{stmp}', 's_mov_b64 exec, -1', f's_add_u32 s{scnt}, s{scnt}, 1', f's_cmp_lg_u32 s{stmp+1}, 0']); armed=False
    return out
def one_stamp(vreg, stmp, scnt, real=False):
    return parse([f'{"s_memrealtime" if (real or REAL) else "s_memtime"} s[{stmp}:{stmp+1}]','s_waitcnt lgkmcnt(0)', f's_lshl_b64 exec, 1, s{scnt}', f'v_mov_b32 v{vreg}, s{stmp}', 's_mov_b64 exec, -1', f's_add_u32 s{scnt}, s{scnt}, 1'])
def lane_dump(vreg, scnt, swave, kid, vt):
    return parse(['s_waitcnt vmcnt(0) lgkmcnt(0)', 's_load_dwordx2 s[4:5], s[0:1], 112', 's_waitcnt lgkmcnt(0)',
       's_and_b32 s5, s5, 0xffff','s_mov_b32 s6, 0x10000000','s_mov_b32 s7, 0x20000',
       's_lshl_b32 s3, s2, 3', f's_add_u32 s3, s3, s{swave}', 's_lshl_b32 s3, s3, 8', f's_add_u32 s3, s3, {(200<<20)+kid*(1<<20)}',
       f's_lshl_b64 exec, 1, 63', f'v_mov_b32 v{vreg}, s{scnt}', 's_mov_b64 exec, -1',
       f'v_mbcnt_lo_u32_b32 v{vt}, -1, 0', f'v_mbcnt_hi_u32_b32 v{vt}, -1, v{vt}', f'v_lshlrev_b32 v{vt}, 2, v{vt}', f'buffer_store_dword v{vreg}, v{vt}, s[4:7], s3 offen', 's_waitcnt vmcnt(0)'])
```

```python
import sys
import gen, fused, k2, stamp, attn
BASE=dict(fused.OPT)
def mk(path, diag=False, single=False, real=False, **opt):
    fused.OPT.clear(); fused.OPT.update(BASE); fused.OPT.update(diag=diag, **opt)
    stamp.REAL=real
    ks=[dict(name='fa_kernel', code=fused.build(), grid=256, block=256, lds=163840, vgpr=512, acc=256, sgpr=102)]
    gen.emit(ks, path, single)
if __name__=='__main__':
    mk('t_f1.s',True)
    mk('t_f2.s',True,real=True)
    mk('t_f3.s',False)
    mk('cdna_kernels/'+gen.NAME+'.s',False,True)
```

```python
from asm import I, parse, check
from sched import F, schedule, lgkm_waits, vm_waits, cycles
MF = 'v_mfma_f32_16x16x32_bf16'

V_L16=1
V_KA=2
V_VA=4
V_NINF=6
V_T=8
V_L=16
V_NM=24
V_S=48
V_P=64
V_OO=128
V_OS=192
A_Q=0
A_OP=96
A_K=160
A_V=192
QS={1:[0,1,2,3],2:[0,1,4,5]}
S_WAVE=20; S_H=21; S_I=22; S_W4K=23; S_KO=24; S_VO=25; S_CNT=26; S_PASS=27; S_T=28
S_MK=32
S_ML=64
SRD_WS=16
KSLOT=lambda u:(u%2)*32768
VSLOT=lambda u:(u%2)*32768
DMAFL=' sc1'

def qreg(b,ds): return A_Q+b*16+ds*4
def oreg(b,dt):
    if b<2: x=V_OO+(b*8+dt)*4; return f'v[{x}:{x+3}]'
    if b<4: x=V_OS+((b-2)*8+dt)*4; return f'v[{x}:{x+3}]'
    x=A_OP+((b-4)*8+dt)*4; return f'a[{x}:{x+3}]'
def preg(par,slot,ks): return V_P+par*32+slot*8+ks*4
def rng(k,b,n=4): return f'{k}[{b}:{b+n-1}]'

class Step:
    def __init__(s, ph, par, kind='plain', e=None, first=()):
        s.ph=ph; s.par=par; s.kind=kind; s.first=set(first)
        s.addr = 0 if ph==1 else 1
        s.koff=[kt*4096 for kt in range(4)]
        s.voff=[0,4096]
        full=[(sl,None) for sl in range(4)]
        if kind=='plain':
            s.tiles=[list(full) for _ in range(4)]
        elif kind=='A':
            s.tiles=[[(sl, ('k',kt) if sl==2 else None) for sl in range(4)] for kt in range(4)]
        elif kind=='B':
            s.tiles=[[(sl, ('k',kt) if sl==3 else None) for sl in (0,1,3)] for kt in range(4)]
        elif kind=='L':
            s.addr=0
            if e==0:
                slotB={0:0,3:1,1:2,2:3}; kss=[0,3]
            else:
                slotB={1:0,2:1,0:2,3:3}; kss=[1,2]
            s.tiles=[]; s.koff=[]; s.voff=[]
            for ks in kss:
                s.voff.append((ks>>1)*16384+(ks&1)*4096)
                for hf in range(2):
                    s.koff.append((2*ks+hf)*4096)
                    row=[(slotB[B], ('l',hf) if B==ks else None) for B in range(ks,4)]
                    row.sort(key=lambda x:-x[0])
                    s.tiles.append(row)
        s.pv={sl:[ks for ks in range(2) if any(x[0]==sl for x in s.tiles[2*ks])] for sl in range(4)}
    def blk(s,slot): return QS[s.ph][slot]

def kread(st,u,kt,ds,ring):
    b=A_K+(ring%2)*16+ds*4
    return f'ds_read_b128 {rng("a",b)}, v{V_KA+st.addr} offset:{KSLOT(u)+st.koff[kt]+ds*1024}'
def vread(st,u,dt,ks):
    b=A_V+(dt%4)*8+ks*4
    return f'ds_read_b128 {rng("a",b)}, v{V_VA+st.addr} offset:{VSLOT(u)+st.voff[ks]+(dt&1)*8192+(dt>>1)*1024}'
def dma_ops(kind,u,ntile):
    so = S_KO if kind=='k' else S_VO
    base = (0 if kind=='k' else 65536) + (u%2)*32768
    ops=[]
    for t in range(ntile):
        for n in range(4):
            pre=[]
            if n==0: pre=[f's_add_u32 m0, s{S_W4K}, {base+t*16384}', f's_add_u32 s{so}, s{so}, 16384']
            ops.append((pre, I(f'buffer_load_dwordx4 v{V_L16}, s[{SRD_WS}:{SRD_WS+3}], s{so} offen offset:{n*1024}{DMAFL} lds', tag=('W',kind,u,base,base+16384*ntile,True))))
    return ops

def tile_ops(sreg,lreg,pdst,alt=False):
    e=[f'v_exp_f32 v{sreg+r}, v{sreg+r}' for r in range(4)]
    a=[f'v_add_f32 v{lreg}, v{lreg}, v{sreg+r}' for r in range(4)]
    c=[f'v_cvt_pk_bf16_f32 v{pdst+j}, v{sreg+2*j}, v{sreg+2*j+1}' for j in range(2)]
    if not alt: return [(e[0],0),(e[1],2),(a[0],5),(a[1],6),(c[0],7),(e[2],8),(e[3],10),(a[2],13),(a[3],14),(c[1],15)]
    return [(e[0],0),(e[1],2),(a[0],4),(a[1],5),(e[2],6),(e[3],8),(c[0],10),(a[2],11),(a[3],13),(c[1],15)]

def block(iters, entry, extraV=None, extraD=None, name='', loopS=(), keep_last=True):
    mf=[]; D=[]; S=[]; pre={}
    T=[]
    if entry is not None: T.append(dict(r=0,t=entry,plain=True,alt=False))
    carry=[]; masks=[]
    for itn,it in enumerate(iters):
        u=it['u']; qk=it['qk']; pv=it['pv']
        plain = (qk is not None and pv is not None and qk.kind in('plain','A') and pv.kind in('plain','A'))
        chains=[]
        if qk:
            for kt in range(4):
                for (sl,mk) in qk.tiles[kt]: chains.append((kt,sl,mk))
        pvc=[]
        if pv:
            order=[0,1,2,3] if pv.kind!='L' else [3,2,0,1]
            for dt in range(8):
                for sl in order:
                    if pv.pv[sl]: pvc.append((dt,sl,pv.pv[sl]))
        nch=len(chains)
        nper=nch+it.get('tailpv',0) if chains else 1
        npvm=sum(len(c[2]) for c in pvc)
        g_it=len(mf)
        k_first={}; k_last={}; v_first={}; v_last={}; o_last={}
        done=0; ip=0
        sring=(16-nch)%4
        for p in range(nper):
            if p<nch:
                kt,sl,mk=chains[p]; b=qk.blk(sl)
                sreg=V_S+(sring%4)*4; sring+=1
                if mk is not None: masks.append((len(T),len(mf),sreg,mk,b))
                for ds in range(4):
                    C = rng('v',V_NM+b*4) if (mk is None and ds==0) else rng('v',sreg)
                    k_first.setdefault((kt,ds),len(mf)); k_last[(kt,ds)]=len(mf)
                    mf.append(f'{MF} {rng("v",sreg)}, {rng("a",A_K+(kt%2)*16+ds*4)}, {rng("a",qreg(b,ds))}, {C}')
                T.append(dict(r=len(mf)-1+5,t=(sreg,V_L+b,preg(qk.par,sl,kt>>1)+2*(kt&1)),plain=plain,alt=(plain and p==11)))
            tgt=(npvm*(p+1)+nper-1)//nper
            while ip<len(pvc) and done<tgt:
                dt,sl,kss=pvc[ip]; ip+=1; b=pv.blk(sl)
                for j,ks in enumerate(kss):
                    C='0' if (b in pv.first and j==0) else oreg(b,dt)
                    v_first.setdefault((dt,ks),len(mf)); v_last[(dt,ks)]=len(mf); o_last[(b,dt)]=len(mf)
                    mf.append(f'{MF} {oreg(b,dt)}, {rng("a",A_V+(dt%4)*8+ks*4)}, {rng("v",preg(pv.par,sl,ks))}, {C}')
                    done+=1
        g_end=len(mf)
        it['g0']=g_it; it['g1']=g_end; it['o_last']=o_last
        vf=lambda d:min(v for (dd,ks),v in v_first.items() if dd==d)
        vl=lambda d:max(v for (dd,ks),v in v_last.items() if dd==d)
        if plain: gb=g_it+12*8+5
        else:
            cand=[g_it]
            if chains: cand.append(k_first[(3,0)])
            if pvc: cand.append(vf(6))
            gb=max(cand)+4
        it['gb']=gb
        ev=[]
        def tag(f,*t): f.i.tag=t; return f
        def spread(ops,lo,hi):
            n=len(ops)
            for j,(o,t) in enumerate(ops):
                g=lo+(hi-lo)*j//max(n,1)
                ev.append((g,tag(F(o,lo=g,hi=g+1),*t)))
        KR=lambda st,uu,kt,ds:(kread(st,uu,kt,ds,kt),('R','k',uu,KSLOT(uu),KSLOT(uu)+16384*st.ph,True))
        VR=lambda st,uu,dt,ks:(vread(st,uu,dt,ks),('R','v',uu,65536+VSLOT(uu),65536+VSLOT(uu)+16384*st.ph,True))
        if plain:
            for p in range(16):
                gk=g_it+p*8+(2 if p!=12 else 6); gv=g_it+p*8+(6 if p!=12 else 7)
                kt=p//4+1; ds=p%4
                o=None
                if kt<4: o=KR(qk,u+1,kt,ds)
                elif it.get('nk'): o=KR(it['nk'],u+2,0,ds)
                if o: ev.append((gk,tag(F(o[0],lo=gk,hi=gk),*o[1])))
                dt=p//2+2; ks=p%2
                o=VR(pv,u,dt,ks) if dt<8 else VR(it['nv'],u+1,dt-8,ks)
                ev.append((gv,tag(F(o[0],lo=gv,hi=gv),*o[1])))
        else:
            if chains:
                for kt in range(1,4):
                    lo = k_last[(kt-2,3)] if kt>=2 else g_it
                    hi = k_first[(kt,0)]-3
                    spread([KR(qk,u+1,kt,ds) for ds in range(4)], lo, max(hi,lo))
            if pvc:
                for dt in range(2,8):
                    spread([VR(pv,u,dt,ks) for ks in range(2)], vf(dt-2), vf(dt-1))
            kk=[KR(it['nk'],u+2,0,ds) for ds in range(4)] if it.get('nk') else []
            vv=[VR(it['nv'],u+1,dt,ks) for dt in range(2) for ks in range(2)] if it.get('nv') else []
            tailops=[]
            for j in range(4):
                if kk: tailops.append(kk[j])
                if vv: tailops.append(vv[j])
            if tailops:
                assert gb+1+len(tailops)<=g_end+2,(name,gb,g_end)
                if chains: assert gb>=k_last[(2,3)]
                if pvc: assert gb>=vl(5)
                spread(tailops, gb+1, g_end-1)
        if it.get('bar',True):
            pre.setdefault(gb-1,[]).append(f's_waitcnt vmkey(k{u+2}|v{u+1}) lgkmcnt(0)' if it.get('vmkey') else f's_waitcnt vmcnt({it.get("vm",0)}) lgkmcnt(0)')
            pre.setdefault(gb,[]).append('s_barrier')
            for x in it.get('post_bar',[]): pre.setdefault(gb,[]).append(x)
        for off,x in it.get('dev',[]): ev.append((g_it+off,F(x,lo=g_it+off,hi=g_it+off)))
        for off,x in it.get('sev',[]): S.append(F(x,lo=g_it+off,hi=g_it+off+1))
        for off,x in it.get('vev',[]): pre.setdefault(g_it+off,[]).append(x)
        def place_dma(ops,gaps):
            prev=None
            for k,((prs,txt),g) in enumerate(zip(ops,gaps)):
                if prs:
                    if plain or prev is None:
                        for j,x in enumerate(prs): S.append(F(x,lo=g-3+j,hi=g-2+j))
                    else: prev.post=[I(x) for x in prs]
                prev=F(txt,lo=g,hi=g if plain else g+1)
                ev.append((g,prev))
        if itn==0: carry=it.get('carry',[])
        if carry:
            gaps=[g_it+3+4*j for j in range(len(carry))]
            assert gaps[-1]<gb-8,(name,gaps,gb)
            place_dma(carry,gaps)
        new=[]
        for kind,nt in it.get('dma',[]):
            new+=dma_ops(kind,(u+3) if kind=='k' else (u+2),nt)
        nnow=min(len(new),6)
        if plain: gaps=[g_it+13*8+3+4*j for j in range(nnow)]
        else:
            lo=gb+4; gaps=[min(lo+(g_end-1-lo)*j//6,g_end-1) for j in range(nnow)]
        place_dma(new[:nnow],gaps)
        carry=new[nnow:]
        D+=ev
    n=len(mf)
    pend=None
    if keep_last and T and iters[-1]['qk'] is not None:
        last=T.pop(); pend=last['t']; rend=n
    else: rend=None
    V=[]
    mk_at={m[0]-2:m for m in masks}
    for k,t in enumerate(T):
        r=t['r']; r1=T[k+1]['r'] if k+1<len(T) else (rend if rend is not None else r+8)
        r=min(r,n-1); L=max(r1-r,0)
        if k in mk_at:
            _,gm,sreg,mk,b=mk_at.pop(k)
            for rr in range(4):
                sm = (S_MK+(mk[1]*4+rr)*2) if mk[0]=='k' else (S_ML+(mk[1]*4+rr)*2)
                V.append(F(f'v_cndmask_b32 v{sreg+rr}, v{V_NINF}, v{V_NM+b*4}, s[{sm}:{sm+1}]',lo=max(0,gm-9),hi=max(0,gm-3)))
        fixed = t['plain'] and L==8
        for txt,pos in tile_ops(*t['t'],t['alt']):
            hi=min(r+pos*L//16,n-1)
            V.append(F(txt,lo=hi if fixed else r,hi=hi))
    assert not mk_at,(name,mk_at)
    if extraV: V=extraV(V,iters,n)
    if extraD: D+=extraD(iters,n)
    mfi=[I(x) for x in mf]
    for f in V:
        w=set(f.i.wr)
        if f.i.op.startswith('v_cvt_pk') or f.i.op.startswith('v_cndmask'):
            for g in range(f.lo+1,n):
                if w & set(mfi[g].rd):
                    f.hi=min(f.hi,max(g-3,0)); break
    for j in range(len(V)-2,-1,-1): V[j].hi=min(V[j].hi,V[j+1].hi)
    for f in V:
        if f.hi<f.lo: f.lo=f.hi
    D.sort(key=lambda e:e[0]); D=[e[1] for e in D]
    for j,x in enumerate(loopS): S.append(F(x,lo=n-8+j,hi=n-4+j))
    S.sort(key=lambda f:f.lo)
    for Q in (D,S):
        for j in range(len(Q)-2,-1,-1): Q[j].hi=max(min(Q[j].hi,Q[j+1].hi),Q[j].lo)
    code,over=schedule(mfi,V,D,S,pre)
    code,_=vm_waits(code)
    return code,pend,carry,over
```

```python
from asm import I, parse, check, fix_hazards, lds_check
from sched import F, schedule, lgkm_waits, vm_waits, vm_reg_waits, cycles
import attn, k2, conv, phasey
from attn import *
from k2 import (ids, masks, after_q, set_negm, kv_offsets, k0reads, CSCALE, S_RB, S_CO, XB, WB)
from k1 import srd
WS_F=60<<20
OPT=dict(ntw='nt', ntwq='', kvst=' sc1', touch=1, diag=False, conv=True, pub=2, pollg=4*64+62, nstA=6, stB=[1,1,0,0,0,2,3,3], stV=7, st0=4, ntcv='nt', rot=1, ntw2='nt', touch0=2, cvpos={0:256+49,12:384+49}, cvgap=1, cvc=5*128, stQ=0, warmA=(6,), warmB=(4,), warmT=1, wotouch=1, kvtouch=0, kvt0=10, sleep=2, tlb=0, hrot=0, qtouch=1, yq=112)
k2.OPT.update(stfl=' sc1', mid_short=phasey.mid_short, slow_extra=['v_accvgpr_write_b32 a251, 0']+phasey.wd_calc(48))
S_SOC=32; S_SOW=40; S_ST=48; S_SOX=56; S_SOQ=64; S_M8=68; S_MW=69; S_C=70; S_X=72
S_R4=86; S_CB=71; S_FL=99; S_TB=100; S_TS=79
VA_A=2; VA_DC=4; VA_DW=5; VA_W=8; VB_XA=12; VB_WA=8; VB_DX=4; VB_DW=5; VT=20
WS_Q=56<<20
def R(o): return ('a',8*o) if o<4 else ('v',32+(o-4)*8)
def tile_reg(mat,a,c):
    o,hi = ((a>>1)*8+(c>>1)*2+(a&1),c&1) if mat==0 else ((a>>1)*8+c,a&1)
    k,b=R(o); return k,b+4*hi,o
QORD=sorted(range(4,32),key=lambda o:((o&7)>>1,o))
def qacc(a,c):
    q=c*4+a
    return ('a',160+4*q) if q<4 else ('v',R(QORD[q-4])[1]+4)
afrag=lambda t,a,s: 32+(t%2)*64+(a*2+s)*4
wfrag=lambda c,s: 160+(c%4)*8+s*4
A_X=32; A_W=192
def a_dma(kind,t):
    ops=[]
    for n in range(8):
        if kind=='c':
            b=(t%2)*32768
            ops.append((I(f'buffer_load_dwordx4 v{VA_DC}, s[8:11], s{S_SOC+n} offen lds',tag=('W','c',t,b,b+32768,True)), f's_add_u32 m0, s{S_M8}, {b+n*1024}'))
        else:
            b=65536+(t%3)*32768
            ops.append((I(f'buffer_load_dwordx4 v{VA_DW}, s[12:15], s{S_SOW+n} offen {OPT["ntw"] if t<4 else OPT["ntw2"]} lds',tag=('W','w',t,b,b+32768,True)), f's_add_u32 m0, s{S_M8}, {b+n*1024}'))
    return ops
def q_dma(kind,t):
    ops=[]
    if kind=='x':
        for n in range(8):
            ops.append((I(f'buffer_load_dwordx4 v{VB_DX}, s[8:11], s{S_SOX+n} offen lds',tag=('W','x',t,XB[t%3],XB[t%3]+32768,False)), f's_add_u32 m0, s{S_M8}, {XB[t%3]+n*1024}'))
    else:
        for n in range(4):
            ops.append((I(f'buffer_load_dwordx4 v{VB_DW}, s[12:15], s{S_SOQ+n} offen lds',tag=('W','wq',t,WB[t%3],WB[t%3]+16384,True)), f's_add_u32 m0, s{S_MW}, {WB[t%3]+n*1024}'))
    return ops
def bump(kind):
    if kind=='c4': return f'v_add_u32 v{VA_DC}, s{S_R4}, v{VA_DC}'
    if kind=='w4': return f'v_add_u32 v{VA_DW}, s{S_R4+1}, v{VA_DW}'
    v,d={'c':(VA_DC,128),'w':(VA_DW,64*8192),'x':(VB_DX,128),'wq':(VB_DW,64*8192)}[kind]
    return f'v_add_u32 v{v}, {d}, v{v}'
def a_read(t,a,s):
    b=afrag(t,a,s); base=(t%2)*32768
    return I(f'ds_read_b128 a[{b}:{b+3}], v{VA_A+s} offset:{base+a*2048}',tag=('R','c',t,base,base+32768,True))
def w_read(t,c,s,hf):
    b=wfrag(c,s)+2*hf; wb=t%3; base=65536+wb*32768
    return I(f'ds_read_b64_tr_b16 a[{b}:{b+1}], v{VA_W+(c%4)+(4 if wb==2 else 0)} offset:{(wb%2)*32768+(c>>2)*8192+s*4096+hf*2048}',tag=('R','w',t,base,base+32768,True))
def x_read(t,a,s):
    b=A_X+(t%2)*32+(a*2+s)*4; base=XB[t%3]
    return I(f'ds_read_b128 a[{b}:{b+3}], v{VB_XA+s+(2 if base>=65536 else 0)} offset:{base%65536+a*2048}',tag=('R','x',t,base,base+32768,False))
def wq_read(t,c,s,hf):
    b=A_W+(c%4)*8+s*4+2*hf
    return I(f'ds_read_b64_tr_b16 a[{b}:{b+1}], v{VB_WA+c%4} offset:{WB[t%3]-98304+(c>>2)*8192+s*4096+hf*2048}',tag=('R','wq',t,WB[t%3],WB[t%3]+16384,True))
def kv_store(o,reg):
    so=(S_ST+(o>>3)*2+(o&1)) if o<16 else ((o>>3)*2+(o&1))
    return I(f'buffer_store_dwordx4 v[{reg}:{reg+3}], v{V_L16}, s[16:19], s{so} offen offset:{((o&7)>>1)*1024}{OPT["kvst"]}',tag=('K','st0' if o<8 else 'st1'))
def pack(o,lo,tmp):
    k,b=R(o); ops=[]
    if k=='a':
        for j in range(8): ops.append(F(f'v_accvgpr_read_b32 v{tmp+j}, a{b+j}',lo=lo))
        b=tmp
    for j in range(4): ops.append(F(f'v_cvt_pk_bf16_f32 v{b+j}, v{b+2*j}, v{b+2*j+1}',lo=lo))
    return ops,b

def setup():
    T=VT; L='v7'; S=S_T
    c=['s_cmp_ge_u32 s2, 256','s_cbranch_scc1 F_END',
       f's_load_dwordx8 s[72:79], s[0:1], 48',
       f's_load_dwordx2 s[4:5], s[0:1], 80',
       f's_load_dwordx2 s[16:17], s[0:1], 112',
       f's_load_dwordx2 s[90:91], s[0:1], 88', f's_load_dwordx4 s[92:95], s[0:1], 96',
       f's_load_dwordx8 s[56:63], s[0:1], 0',
       f's_load_dwordx4 s[24:27], s[0:1], 32']
    if OPT['hrot']: c+=[f's_xor_b32 s2, s2, {OPT["hrot"]<<3}']
    c+=[f'v_lshrrev_b32 v{T}, 6, v0', f'v_and_b32 {L}, 63, v0', f'v_readfirstlane_b32 s{S_WAVE}, v{T}',
        f's_and_b32 s{S_H}, s2, 7', f's_lshl_b32 s{S_H}, s{S_H}, 2', f's_bfe_u32 s{S}, s2, 0x20003', f's_add_u32 s{S_H}, s{S_H}, s{S}',
        f's_lshr_b32 s{S_I}, s2, 5', f's_lshl_b32 s{S_M8}, s{S_WAVE}, 13']
    for n in range(8): c.append(f's_mov_b32 s{S_SOC+n}, {((n>>2)*512+(n&3)*8)*1024}')
    c+=[f'v_lshrrev_b32 v{T}, 3, {L}', f'v_and_b32 v{T+1}, 6, v{T}', f'v_xor_b32 v{T+1}, v{T+1}, {L}', f'v_and_b32 v{T+1}, 7, v{T+1}',
        f'v_lshlrev_b32 v{T+1}, 4, v{T+1}', f'v_lshl_add_u32 v{VA_DC}, v{T}, 10, v{T+1}',
        f's_lshl_b32 s{S}, s{S_I}, 16', f's_and_b32 s{S+1}, s{S_WAVE}, 1', f's_lshl_b32 s{S+2}, s{S+1}, 20', f's_add_u32 s{S}, s{S}, s{S+2}',
        f's_lshr_b32 s{S+2}, s{S_WAVE}, 1', f's_lshl_b32 s{S+2}, s{S+2}, 15', f's_add_u32 s{S_CB}, s{S}, s{S+2}',
        f's_add_u32 s{S_R4+2}, s{S_I}, s{S_H}', f's_and_b32 s{S_R4+2}, s{S_R4+2}, {1 if OPT["rot"] else 0}', f's_lshl_b32 s{S+2}, s{S_R4+2}, 9', f's_add_u32 s{S}, s{S_CB}, s{S+2}',
        f'v_add_u32 v{VA_DC}, s{S}, v{VA_DC}', f's_sub_u32 s{S_CB}, s{S_CB}, s{S+2}']
    c+=['s_waitcnt lgkmcnt(0)']+srd(8,74,2048*512*2)
    for d,m in a_dma('c',0): c+=[m,'s_nop 0',d]
    for n in range(8): c.append(f's_mov_b32 s{S_SOW+n}, {(32*(n>>2)+16*(n&1)+4*((n>>1)&1))*8192}')
    c+=[f'v_lshrrev_b32 v{T+1}, 2, v{T}', f'v_lshlrev_b32 v{T+1}, 3, v{T+1}', f'v_and_b32 v{T+2}, 3, v{T}', f'v_add_u32 v{T+1}, v{T+1}, v{T+2}',
        f'v_lshlrev_b32 v{VA_DW}, 13, v{T+1}',
        f'v_bfe_u32 v{T+1}, {L}, 1, 2', f'v_lshrrev_b32 v{T+2}, 4, {L}', f'v_xor_b32 v{T+1}, v{T+1}, v{T+2}',
        f'v_lshl_add_u32 v{VA_DW}, v{T+1}, 5, v{VA_DW}', f'v_and_b32 v{T+1}, 1, {L}', f'v_lshl_add_u32 v{VA_DW}, v{T+1}, 4, v{VA_DW}',
        f's_lshl_b32 s{S}, s{S_H}, 8', f's_lshl_b32 s{S+1}, s{S+1}, 7', f's_add_u32 s{S}, s{S}, s{S+1}',
        f's_lshl_b32 s{S+1}, s{S_R4+2}, 21', f's_add_u32 s{S}, s{S}, s{S+1}',
        f'v_add_u32 v{VA_DW}, s{S}, v{VA_DW}']
    c+=[f's_cmp_lt_u32 s{S_WAVE}, 2', 's_cselect_b32 s12, s78, s4', 's_cselect_b32 s13, s79, s5', 's_and_b32 s13, s13, 0xffff', f's_mov_b32 s14, {512*4096*2}', 's_mov_b32 s15, 0x20000']
    for d,m in a_dma('w',0): c+=[m,'s_nop 0',d]
    c+=['s_and_b32 s17, s17, 0xffff', f's_mov_b32 s18, {128<<20}', 's_mov_b32 s19, 0x20000']
    c+=[f's_getpc_b64 s[{S}:{S+1}]','F_PC:', f's_lshr_b32 s{S+2}, s2, 3', f's_lshl_b32 s{S+2}, s{S+2}, 2', f's_add_u32 s{S+2}, s{S+2}, s{S_WAVE}', f's_lshl_b32 s{S+2}, s{S+2}, 10',
        f'v_and_b32 v{T}, 7, {L}', f'v_lshlrev_b32 v{T}, 7, v{T}', f'v_add_u32 v{T}, s{S+2}, v{T}', f'v_min_u32 v{T}, F_END-F_PC, v{T}',
        f'global_load_dword a249, v{T}, s[{S}:{S+1}]', f'v_accvgpr_write_b32 a251, v{T}']
    for kind,t in (('c',1),('w',1)):
        c.append(bump(kind))
        for d,m in a_dma(kind,t): c+=[m,'s_nop 0',d]
    c+=[f'v_mov_b32 v{T+1}, 0', f's_lshl_b32 s{S_FL}, s2, 2', f's_add_u32 s{S_FL}, s{S_FL}, s{S_WAVE}', f's_lshl_b32 s{S_FL}, s{S_FL}, 7', f's_add_u32 s{S_FL}, s{S_FL}, {WS_F}',
        I(f'buffer_store_dword v{T+1}, v{T+1}, s[16:19], s{S_FL} offen sc1',tag=('K','rst'))]
    c+=[x for x in ids()[8:]]
    c+=[f's_and_b32 s{S}, s2, 7', f's_lshl_b32 s{S}, s{S}, 5', f's_lshr_b32 s{S+1}, s2, 3', f's_add_u32 s{S}, s{S}, s{S+1}', f's_lshl_b32 s{S}, s{S}, 2', f's_load_dword s89, s[26:27], s{S}']
    c+=[f's_lshl_b32 s{S}, s{S_R4+2}, 10', f's_sub_u32 s{S_R4}, 128, s{S}', f's_lshl_b32 s{S}, s{S_R4+2}, 22', f's_sub_u32 s{S_R4+1}, {64*8192}, s{S}',
        f's_lshl_b32 s{S}, s{S_R4+2}, 21', f's_sub_u32 s{S_R4+2}, {7*64*8192}, s{S}']
    c+=[f'v_and_b32 v{T}, 15, {L}', f'v_lshrrev_b32 v{T+1}, 4, {L}', f'v_and_b32 v{T+2}, 6, v{T}', f'v_xor_b32 v{T+1}, v{T+1}, v{T+2}',
        f'v_lshlrev_b32 v{T+1}, 4, v{T+1}', f'v_lshl_add_u32 v6, v{T}, 7, v{T+1}',
        f's_lshr_b32 s{S}, s{S_WAVE}, 1', f's_lshl_b32 s{S}, s{S}, 14', f'v_add_u32 v{VA_A}, s{S}, v6', f'v_xor_b32 v{VA_A+1}, 64, v{VA_A}']
    c+=[f'v_lshrrev_b32 v{T}, 2, {L}', f'v_lshlrev_b32 v{T}, 7, v{T}', f'v_and_b32 v{T+1}, 3, {L}', f'v_lshl_add_u32 v{T}, v{T+1}, 3, v{T}',
        f'v_bfe_u32 v{T+1}, {L}, 3, 2', f'v_lshl_add_u32 v{T}, v{T+1}, 5, v{T}',
        f's_and_b32 s{S}, s{S_WAVE}, 1', f's_lshl_b32 s{S}, s{S}, 14', f's_add_u32 s{S}, s{S}, 65536', f'v_add_u32 v{T}, s{S}, v{T}']
    for c4 in range(4): c+=[f'v_xor_b32 v{VA_W+c4}, {c4*32}, v{T}', f'v_add_u32 v{VA_W+4+c4}, 65536, v{VA_W+c4}']
    c+=[f's_lshl_b32 s{S}, s{S_H}, 19', f's_lshl_b32 s{S+1}, s{S_I}, 14', f's_add_u32 s{S}, s{S}, s{S+1}',
        f's_lshr_b32 s{S+1}, s{S_WAVE}, 1', f's_lshl_b32 s{S+2}, s{S+1}, 13', f's_lshl_b32 s{S+1}, s{S+1}, 12', f's_add_u32 s{S+1}, s{S+1}, {16<<20}',
        f's_bitcmp1_b32 s{S_WAVE}, 0', f's_cselect_b32 s{S+1}, s{S+1}, s{S+2}', f's_movk_i32 s{S+2}, 4096', f's_cselect_b32 s{S+2}, 8192, s{S+2}',
        f's_add_u32 s{S_ST}, s{S}, s{S+1}', f's_add_u32 s{S_ST+1}, s{S_ST}, s{S+2}']
    for n in range(2,8): c+=[f's_add_u32 s{S_ST+n}, s{S_ST+n-2}, {8*16384}']
    c+=[f's_lshr_b32 s{S}, s{S_WAVE}, 1', f's_lshl_b32 s{S}, s{S}, 18']
    for n in range(4): c+=[f's_add_u32 s{S_SOQ+n}, s{S}, {(16*(n&1)+4*(n>>1))*8192}']
    c+=[f's_and_b32 s{S}, s{S_WAVE}, 1', f's_lshl_b32 s{S}, s{S}, 13', f's_lshr_b32 s{S+1}, s{S_WAVE}, 1', f's_lshl_b32 s{S+1}, s{S+1}, 12', f's_add_u32 s{S_MW}, s{S}, s{S+1}',
        f's_mov_b32 s{S_C}, {CSCALE:#x}']
    c+=[f's_cmp_lt_u32 s{S_WAVE}, 2', f's_cselect_b32 s{S_TB}, s76, s72', f's_cselect_b32 s{S_TB+1}, s77, s73', f's_movk_i32 s{S}, 256', f's_cselect_b32 s{S_TS}, {128*8192}, s{S}',
        's_cselect_b64 vcc, -1, 0',
        f's_lshl_b32 s{S}, s{S_I}, 17', f's_lshl_b32 s{S+1}, s{S_H}, 8', f's_add_u32 s{S}, s{S}, s{S+1}', f's_and_b32 s{S+2}, s{S_WAVE}, 1', f's_lshl_b32 s{S+1}, s{S+2}, 7', f's_add_u32 s{S}, s{S}, s{S+1}',
        f'v_and_b32 v{T}, 15, {L}', f'v_lshlrev_b32 v{T}, 13, v{T}', f'v_add_u32 v{T}, s{S}, v{T}',
        f's_lshl_b32 s{S}, s2, 13', f's_lshl_b32 s{S+1}, s{S+2}, 12', f's_add_u32 s{S}, s{S}, s{S+1}',
        f'v_and_b32 v{T+1}, 3, {L}', f'v_lshlrev_b32 v{T+1}, 10, v{T+1}', f'v_bfe_u32 v{T+2}, {L}, 2, 1', f'v_lshl_add_u32 v{T+1}, v{T+2}, 7, v{T+1}', f'v_add_u32 v{T+1}, s{S}, v{T+1}',
        f'v_cndmask_b32 v0, v{T+1}, v{T}, vcc']
    if OPT['touch']==2:
        c+=[f'v_mov_b32 v{T}, s{S_RB}', f'v_mov_b32 v{T+1}, s{S_RB+1}', 'v_cmp_le_u32 vcc, 16, v7', 's_nop 1', f'v_cndmask_b32 v{T}, v{T}, v{T+1}, vcc',
            f'v_mov_b32 v{T+1}, s{S_RB+2}', 'v_cmp_le_u32 vcc, 32, v7', 's_nop 1', f'v_cndmask_b32 v{T}, v{T}, v{T+1}, vcc',
            f'v_mov_b32 v{T+1}, s{S_RB+3}', 'v_cmp_le_u32 vcc, 48, v7', 's_nop 1', f'v_cndmask_b32 v{T}, v{T}, v{T+1}, vcc',
            f'v_lshlrev_b32 v{T}, 14, v{T}', f'v_and_b32 v{T+1}, 15, v7', f'v_lshl_add_u32 v{T}, v{T+1}, 10, v{T}', f's_and_b32 s{S}, s{S_H}, 3', f's_lshl_b32 s{S}, s{S}, 8', f'v_add_u32 v31, s{S}, v{T}']
    if OPT['tlb']:
        c+=[f's_lshr_b32 s{S}, s2, 3', f's_lshl_b32 s{S}, s{S}, 1', f's_and_b32 s{S+1}, s{S_WAVE}, 1', f's_add_u32 s{S}, s{S}, s{S+1}',
            f's_sub_u32 s{S+1}, s{S}, 7', f's_sub_u32 s{S+2}, s{S}, 20', f's_lshl_b32 s{S+2}, s{S+2}, 21',
            f's_cmp_lt_u32 s{S}, 20', f's_cselect_b32 s{S+1}, s{S+1}, 14', f's_cselect_b32 s{S+2}, 0x200000, s{S+2}',
            f's_cmp_lt_u32 s{S}, 15', f's_cselect_b32 s{S+1}, s{S}, s{S+1}', f's_cselect_b32 s{S+2}, 0, s{S+2}',
            f's_lshl_b32 s{S+1}, s{S+1}, 3', f's_load_dwordx2 s[4:5], s[0:1], s{S+1}', f'v_mov_b32 v{T}, s{S+2}',
            f's_cmp_lt_u32 s{S_WAVE}, 2', 's_waitcnt lgkmcnt(0)', 's_cbranch_scc1 F_ARRT', f'global_load_dword a250, v{T}, s[4:5] sc1', 'F_ARRT:']
    c+=['s_mov_b32 s74, s56','s_mov_b32 s75, s57']
    c+=['s_mov_b32 s4, s58','s_and_b32 s5, s59, 0xffff', f's_mov_b32 s6, {2048*1024}', 's_mov_b32 s7, 0x20000']
    c+=['s_waitcnt vmkey(c0) lgkmcnt(0)','s_barrier']
    for a in range(8):
        for s in range(2): c.append(a_read(0,a,s))
        if a==5: c.append('s_waitcnt lgkmcnt(4)')
    c+=['s_waitcnt vmkey(w0|c1) lgkmcnt(0)','s_barrier']
    for s in range(2):
        for hf in range(2): c.append(w_read(0,0,s,hf))
    return c

WN=[0]
def rewarm(vt,sp):
    WN[0]+=1; lab=f'F_W{WN[0]}'
    return [f's_getpc_b64 s[{sp}:{sp+1}]', f'{lab}:', f's_sub_u32 s{sp}, s{sp}, {lab}-F_PC', f's_subb_u32 s{sp+1}, s{sp+1}, 0', f'v_accvgpr_read_b32 v{vt}, a251', f'global_load_dword a249, v{vt}, s[{sp}:{sp+1}]']
def conv1(g0):
    L='v7'; S=S_T
    aK=192; aV=204; aW=216; aQ=240; aO=224
    A=16
    o=conv.tile_ids(S+3,S,S_WAVE,A,L)
    o+=[f'v_subrev_u32 v19, 4096, v{A}', f'v_lshlrev_b32 v20, 4, v17', f's_movk_i32 s3, 4096']
    def ld(dst,r,key):
        base,so=(19,'0') if r<4 else ((A,'0') if r<8 else (A,'s3'))
        return I(f'buffer_load_dword a{dst}, v{base}, s[4:7], {so} offen offset:{(r%4)*1024} {OPT["ntcv"]}',tag=('K',key))
    for r in range(12): o.append(ld(aK+r,r,'cv'))
    o+=['s_mov_b32 s4, s60','s_and_b32 s5, s61, 0xffff']
    for r in range(3,12): o.append(ld(aV+r-3,r,'cv'))
    o+=['s_mov_b32 s4, s62','s_and_b32 s5, s63, 0xffff','s_movk_i32 s6, 4096', I(f'buffer_load_dwordx4 a[{aW}:{aW+3}], v20, s[4:7], 0 offen',tag=('K','cv'))]
    o+=['s_mov_b32 s4, s24','s_and_b32 s5, s25, 0xffff',f's_mov_b32 s6, {512*4096}', 's_and_b32 s3, s2, 7', 's_lshl_b32 s3, s3, 5', 's_lshr_b32 s24, s2, 3', 's_add_u32 s3, s3, s24', 's_lshl_b32 s3, s3, 13',
        f's_lshl_b32 s24, s{S_WAVE}, 11', 's_add_u32 s3, s3, s24']
    for n in range(2): o.append(I(f'buffer_load_dwordx4 a[{240+4*n}:{243+4*n}], v{V_L16}, s[4:7], s3 offen offset:{n*1024} {OPT["ntcv"]}',tag=('K','cv')))
    loads=o
    WF=[19,20,21,22]; KF=[24,25,26,27]; U=[30,31]; T=17
    c=[]
    for ch in range(2):
        un=(lambda d: f'v_lshlrev_b32 v{d}, 16, v{d}') if ch==0 else (lambda d: f'v_and_b32 v{d}, 0xffff0000, v{d}')
        for j in range(4):
            c+=[f'v_accvgpr_read_b32 v{WF[j]}, a{aW+2*ch+j//2}', f'v_lshlrev_b32 v{WF[j]}, 16, v{WF[j]}' if j%2==0 else f'v_and_b32 v{WF[j]}, 0xffff0000, v{WF[j]}']
        for r in range(3): c+=[f'v_accvgpr_read_b32 v{KF[r%4]}, a{aK+r}', un(KF[r%4])]
        for t in range(9):
            u=U[t%2]; r=t+3
            c+=[f'v_accvgpr_read_b32 v{KF[r%4]}, a{aK+r}', un(KF[r%4]),
                f'v_mul_f32 v{u}, v{KF[t%4]}, v{WF[3]}', f'v_fmac_f32 v{u}, v{KF[(t+1)%4]}, v{WF[2]}', f'v_fmac_f32 v{u}, v{KF[(t+2)%4]}, v{WF[1]}', f'v_fmac_f32 v{u}, v{KF[(t+3)%4]}, v{WF[0]}',
                f'v_accvgpr_read_b32 v{T}, a{aV+t}', un(T), f'v_mul_f32 v{u}, v{u}, v{T}']
            if t>=1:
                dst = aO+ch*8+((8-t)//2 if t%2==0 else 4+(7-t)//2)
                c+=[f'v_cvt_pk_bf16_f32 v{T}, v{u}, v{U[(t-1)%2]}', f'v_accvgpr_write_b32 a{dst}, v{T}']
    T=24; S=24
    c+=[f'v_and_b32 v{T}, 31, v7', f'v_lshrrev_b32 v{T+1}, 5, v7', f's_lshl_b32 s{S}, s{S_WAVE}, 1', f's_sub_u32 s{S}, 7, s{S}', f'v_sub_u32 v{T+1}, s{S}, v{T+1}',
       f'v_xor_b32 v{T+1}, v{T+1}, v{T}', f'v_and_b32 v{T+1}, 7, v{T+1}', f'v_lshlrev_b32 v{T}, 9, v{T}', f'v_lshl_add_u32 v{T}, v{T+1}, 4, v{T}', f'v_add_u32 v20, {SP}, v{T}']
    c+=[f'v_lshrrev_b32 v{T+1}, 3, v7', f's_lshl_b32 s{S}, s{S_WAVE}, 3', f'v_add_u32 v{T+2}, s{S}, v{T+1}', f'v_xor_b32 v{T+1}, v{T+1}, v7', f'v_and_b32 v{T+1}, 7, v{T+1}',
        f'v_lshlrev_b32 v21, 9, v{T+2}', f'v_lshl_add_u32 v21, v{T+1}, 4, v21', f'v_add_u32 v21, {SP}, v21',
        f's_and_b32 s{S}, s2, 7', f's_lshl_b32 s{S}, s{S}, 5', f'v_add_u32 v{T+2}, s{S}, v{T+2}', f'v_lshlrev_b32 v22, 14, v{T+2}', f'v_and_b32 v{T+1}, 7, v7', f'v_lshl_add_u32 v22, v{T+1}, 4, v22',
        f's_lshr_b32 s{S}, s2, 3', f's_sub_u32 s{S}, 31, s{S}', f's_lshl_b32 s{S}, s{S}, 7', f's_add_u32 s{S}, s{S}, {phasey.WS_U}', f'v_add_u32 v22, s{S}, v22']
    return loads,c
SP=114688
QX=99328
CS=4160; UB=65536; UCH=4*CS; HBASE=16384; HCH=4608
def warm_calc(T):
    S=S_T
    return [f's_lshr_b32 s{S+2}, s2, 3', f's_lshl_b32 s{S+2}, s{S+2}, 2', f's_add_u32 s{S+2}, s{S+2}, s{S_WAVE}', f's_lshl_b32 s{S+2}, s{S+2}, 10',
        f'v_and_b32 v{T}, 7, v7', f'v_lshlrev_b32 v{T}, 7, v{T}', f'v_add_u32 v{T}, s{S+2}, v{T}', f'v_min_u32 v{T}, F_END-F_PC, v{T}', f'v_accvgpr_write_b32 a251, v{T}']
def att_misc():
    return phasey.tail_setup()+['v_lshrrev_b32 v8, 3, v7','v_lshlrev_b32 v8, 14, v8','v_mov_b32 v10, 0','v_mov_b32 v11, 2','s_mov_b32 s8, 0',f's_mov_b32 s{phasey.S_EARLY}, 0',
            f's_and_b32 s{S_PF}, s{S_FL}, {0xffffffff^(7<<14):#x}']+touch_setup()
def qt_calc():
    S=S_T
    return [f's_lshr_b32 s{S}, s2, 3', f's_lshl_b32 s{S}, s{S}, 16', f's_lshl_b32 s{S+1}, s{S_WAVE}, 14', f's_add_u32 s{S}, s{S}, s{S+1}', f's_and_b32 s{S+1}, s2, 7', f's_lshl_b32 s{S+1}, s{S+1}, 7', f's_add_u32 s{S}, s{S}, s{S+1}',
            'v_lshrrev_b32 v22, 2, v7', 'v_lshlrev_b32 v22, 10, v22', f'v_add_u32 v22, s{S}, v22']

def place(grp,pos,EV,S,V):
    prev=None; pg=None
    for (bk,d,m),g in zip(grp,pos):
        if bk: V.append(F(bump(bk),lo=(g-3 if pg is None else pg),hi=g-1))
        if prev is None: S.append(F(m,lo=g-2,hi=g-1))
        else: prev.post=[I(m)]
        prev=F(d,lo=g,hi=g+1); pg=g; EV.append((g,prev))
def grp_of(fn,kind,t,bk):
    return [((bk if n==0 else None),d,m) for n,(d,m) in enumerate(fn(kind,t))]

def phaseA(mat):
    mf=[];S=[];V=[];pre={};EV=[];G=[]
    for t in range(8):
        g0=t*128
        for c in range(8):
            for a in range(8):
                for s in range(2):
                    A=afrag(t,a,s); W=wfrag(c,s); k,b,o=tile_reg(mat,a,c); acc=f'{k}[{b}:{b+3}]'
                    x,y=(f'a[{W}:{W+3}]',f'a[{A}:{A+3}]') if mat==0 else (f'a[{A}:{A+3}]',f'a[{W}:{W+3}]')
                    mf.append(f'{MF} {acc}, {x}, {y}, {"0" if (t==0 and s==0) else acc}')
        for c in range(8):
            tt,cc=(t,c+1) if c<7 else (t+1,0)
            if tt<8:
                for k,(s,hf) in enumerate(((0,0),(0,1),(1,0),(1,1))):
                    g=g0+c*16+k+(2 if c==7 else 0); EV.append((g,F(w_read(tt,cc,s,hf),lo=g)))
        pos=[5,9,13,21,25,29,37,45]+[53+8*k for k in range(8)] if t==0 else [g0-9,g0-3]+[g0+5+8*k for k in range(14)]
        if t<6: grp=grp_of(a_dma,'c',t+2,'c4' if t==2 else 'c')+grp_of(a_dma,'w',t+2,'w4' if t==2 else 'w')
        elif t==6:
            grp=grp_of(q_dma,'x',0,None)+grp_of(q_dma,'wq',0,None)+grp_of(q_dma,'wq',1,'wq')
            for j,x in enumerate(srd(8,72,2048*512*2)[:2]+srd(12,76,0)[:2]): S.append(F(x,lo=g0-15,hi=g0-12))
            sx=[]
            for n in range(8):
                sx+=[f's_lshl_b32 s{S_SOX+n}, s{S_RB+(n>>1)}, 14']
                if n&1: sx+=[f's_add_u32 s{S_SOX+n}, s{S_SOX+n}, 8192']
            sx+=[f's_add_u32 s{S_CB}, s{S_CB}, {7*128}']
            for x in sx: S.append(F(x,lo=g0-60,hi=g0-30))
            V.append(F(f'v_subrev_u32 v{VB_DX}, s{S_CB}, v{VA_DC}',lo=g0-28,hi=g0-20))
            V.append(F(f'v_subrev_u32 v{VB_DW}, s{S_R4+2}, v{VA_DW}',lo=g0-14,hi=g0-12))
        else: grp=grp_of(q_dma,'x',1,'x')+grp_of(q_dma,'x',2,'x')
        place(grp,pos,EV,S,V)
        if t<7:
            k=0
            for a in range(8):
                for s in range(2):
                    g=g0+(k//3)*16+7+(k%3)*2+(1 if (t==0 and k<6) else 0); EV.append((g,F(a_read(t+1,a,s),lo=g))); k+=1
            keys=f'w{t+1}'+(f'|c{t+2}' if t<6 else '')
            pre[g0+112]=[f's_waitcnt vmkey({keys}) lgkmcnt(0)']; pre[g0+113]=['s_barrier']
            if mat==0 and 1<=t<=4:
                lab=f'F_ARR{t}'
                pre[g0+113]+=[f's_lshr_b32 s{S_T}, s{S_I}, 1', f's_lshl_b32 s{S_T+1}, s{S_WAVE}, 2', f's_add_u32 s{S_T}, s{S_T}, s{S_T+1}', f's_cmp_lg_u32 s{S_T}, {t-1}', f's_cbranch_scc1 {lab}',
                                's_mov_b64 exec, 1', f's_and_b32 s{S_T}, s2, 7', f's_lshl_b32 s{S_T}, s{S_T}, 5', f'v_mov_b32 v28, s{S_T}', f'v_mov_b32 v29, 1',
                                'global_atomic_add v28, v29, s[94:95] sc1', 's_mov_b64 exec, -1', f'{lab}:']
        if t in OPT['warmA']: pre.setdefault(g0+46,[]).extend(rewarm(28,S_T))
        t0=OPT.get('touch0',1)
        if t0<=t<t0+4 and OPT['touch']:
            EV.append((g0+47,F(I(f'global_load_dword a{252+t-t0}, v0, s[{S_TB}:{S_TB+1}] {OPT["ntwq"]}',tag=('K','touch')),lo=g0+47,hi=g0+48)))
            V.append(F(f'v_add_u32 v0, s{S_TS}, v0',lo=g0+50,hi=g0+52))
        if OPT['touch']==2 and t in OPT.get('t2',(4,5)):
            j=OPT.get('t2',(4,5)).index(t)
            EV.append((g0+63,F(I(f'global_load_dword a{250+j}, v31, s[72:73] offset:{j*128}',tag=('K','touch')),lo=g0+63,hi=g0+64)))
        if t==6:
            for j,x in enumerate([f'v_add_u32 v{VB_XA}, s{S_M8}, v6', f'v_xor_b32 v{VB_XA+1}, 64, v{VB_XA}', f'v_add_u32 v{VB_XA+2}, 65536, v{VB_XA}', f'v_add_u32 v{VB_XA+3}, 65536, v{VB_XA+1}']):
                V.append(F(x,lo=g0+20,hi=g0+30))
    if OPT['conv']:
        ld,cp=conv1(0)
        g=128+14; nd=0
        for x in ld:
            f=F(x,lo=g)
            if f.cls=='D':
                if nd in OPT['cvpos']: g=OPT['cvpos'][nd]; f.lo=g
                g+=OPT['cvgap']; nd+=1
            G.append(f)
        print('conv1 loads end',g)
        g=max(g,OPT.get('cvc',5*128-10))
        for x in cp: G.append(F(x,lo=g))
    V.sort(key=lambda f:f.lo)
    g0=7*128; n=len(mf)
    done={}
    for c in range(8):
        for a in range(8):
            k,b,o=tile_reg(mat,a,c); done[o]=max(done.get(o,0),g0+c*16+a*2+1)
    V7=[]
    for o in sorted(range(32),key=lambda o:done[o]):
        if o in LATE: continue
        lo=done[o]+5
        assert lo<n-1
        ops,reg=pack(o,lo,24)
        V7+=ops
        if o<OPT['nstA']: V7.append(F(kv_store(o,reg),lo=lo))
    adj=[F(f'v_add_u32 v{VB_WA+j}, {32768-mat*16384}, v{VB_WA+j}',lo=g0+104,hi=g0+110) for j in range(4)]
    rest=[f for f in V if f.lo>=g0-4]+adj; V=[f for f in V if f.lo<g0-4]
    rest.sort(key=lambda f:f.lo)
    merged=[];i=0
    for f in V7:
        while i<len(rest) and rest[i].lo<=f.lo+8: merged.append(rest[i]); i+=1
        merged.append(f)
    merged+=rest[i:]
    for j in range(len(merged)-2,-1,-1): merged[j].hi=min(merged[j].hi,merged[j+1].hi)
    V+=merged
    pre[g0+54]=['s_waitcnt vmkey(x0)']
    for k in range(8):
        g=g0+55+(k//3)*16+(k%3)*2; EV.append((g,F(x_read(0,k//2,k%2),lo=g)))
    pre[g0+112]=['s_waitcnt vmkey(wq0|x1) lgkmcnt(0)']; pre[g0+113]=['s_barrier']
    k=0
    for cc in range(2):
        for s in range(2):
            for hf in range(2):
                g=g0+114+k; EV.append((g,F(wq_read(0,cc,s,hf),lo=g))); k+=1
    EV.sort(key=lambda e:e[0]); S.sort(key=lambda f:f.lo)
    glast=G[-1].i if G else None
    code,over=schedule(mf,V,[e[1] for e in EV],S,pre,G)
    if glast:
        k=[j for j,x in enumerate(code) if x is glast][0]; ng=sum(x.kind=='mfma' for x in code[:k])
        print('conv1 ends at gap',ng); assert ng<7*128
    return code,over
LATE=(14,15,22,23,30,31)
LATEST=sorted(range(16,32),key=lambda o:(o&3,o))
SIDE=[]
SPIN=1000000
def spin(name, load, cmp_, cnt=S_T+3):
    SIDE.extend([f'{name}_S:', f's_mov_b32 s{cnt}, 0', f'{name}_L:', 's_mov_b64 exec, vcc']+([f's_sleep {OPT["sleep"]}'] if OPT['sleep'] else [])+[load, f's_add_u32 s{cnt}, s{cnt}, 1', 's_waitcnt vmcnt(0)', cmp_,
                 f's_cmp_gt_u32 s{cnt}, {SPIN}', f's_cbranch_scc1 {name}_X', f's_cbranch_vccnz {name}_L', f'{name}_X:', 's_mov_b64 exec, -1', f's_branch {name}_R'])
    return [cmp_, 's_nop 0', f's_cbranch_vccnz {name}_S', f'{name}_R:']
S_PF=3
def phaseB():
    mf=[];V=[];S=[];EV=[];pre={};G=[];marks=[]
    pub=OPT['pub']
    def chain(ops,pos):
        prev=None
        for (prs,txt),g in zip(ops,pos):
            if prs:
                if prev is None:
                    for j,x in enumerate(prs): S.append(F(x,lo=g-3+j,hi=g-2+j))
                else: prev.post=[I(x) for x in prs]
            prev=F(txt,lo=g,hi=g+1); EV.append((g,prev))
    tW=('W','cv',None,UB,UB+2*UCH,True); tR=('R','cv',None,UB,UB+2*UCH,True)
    hW=('W','ch',None,HBASE,HBASE+2*HCH,True); hR=('R','ch',None,HBASE,HBASE+2*HCH,True)
    for t in range(8):
        g0=t*64
        for cc in range(8):
            for a in range(4):
                for s in range(2):
                    W=A_W+(cc%4)*8+s*4; X=A_X+(t%2)*32+(a*2+s)*4; A=rng(*qacc(a,cc))
                    mf.append(f'{MF} {A}, a[{W}:{W+3}], a[{X}:{X+3}], {"0" if (t==0 and s==0) else A}')
        for cc in range(8):
            tt,c2=(t,cc+2) if cc<6 else (t+1,cc-6)
            if tt<8:
                for k,(s,hf) in enumerate(((0,0),(0,1),(1,0),(1,1))):
                    g=g0+cc*8+k+(2 if cc==6 else 0); EV.append((g,F(wq_read(tt,c2,s,hf),lo=g,hi=g+3)))
        if t<7:
            for k in range(8):
                g=g0+(k//2)*8+4+(k%2)*2; EV.append((g,F(x_read(t+1,k//2,k%2),lo=g,hi=g+3)))
            keys=f'wq{t+1}'+(f'|x{t+2}' if t<6 else '')+('|st0|arr' if t==pub else '')+('|fl' if t==5 else '')
            pre[g0+48]=[f's_waitcnt vmkey({keys}) lgkmcnt(0)']; pre[g0+49]=['s_barrier']
        grp=[]
        if t+2<8: grp+=grp_of(q_dma,'wq',t+2,'wq')
        if t+3<8: grp+=grp_of(q_dma,'x',t+3,'x')
        pos=[g0-9,g0-3,g0-1]+[g0+5,g0+7,g0+13,g0+15,g0+21,g0+29,g0+36,g0+38,g0+44] if t>0 else [5,7,13,15,21,23,29,31,36,38,44,46]
        place(grp,pos,EV,S,V)
        if t==6:
            ud=[([f's_add_u32 m0, s34, {q*2*CS}'] if n==0 else [], I(f'buffer_load_dwordx4 v{V_L16}, s[8:11], s{32+q} offen offset:{n*1024} sc1 lds',tag=tW)) for q in range(2) for n in range(4)]
            chain(ud+dma_ops('k',0,1),pos)
        if t==7: chain(dma_ops('k',1,1),pos)
    NB=len(mf)
    c1W=('W','c1',None,SP,SP+16384,True); c1R=('R','c1',None,SP,SP+16384,True)
    for k,g in enumerate((37,39,45,47)): EV.append((g-0,F(I(f'ds_write_b128 v20, a[{224+4*k}:{227+4*k}] offset:{k*128}',tag=c1W),lo=g,hi=g)))
    for k,g in enumerate((54,60,62,64+23)): EV.append((g,F(I(f'ds_read_b128 a[{224+4*k}:{227+4*k}], v21 offset:{k*128}',tag=c1R),lo=g,hi=g+1)))
    chain([([f's_movk_i32 s36, {k*4096}'],I(f'buffer_store_dwordx4 a[{224+4*k}:{227+4*k}], v22, s[16:19], s36 offen sc1',tag=('K','st0'))) for k in range(4)],[64+37,64+39,64+45,64+46])
    for t in OPT['warmB']: pre.setdefault(t*64+46,[]).extend(rewarm(30,S_T))
    for o in LATE:
        ops,reg=pack(o,3,0); V+=ops
    for n in range(4,8): S.append(F(f's_mov_b32 s{n}, s{S_ST+n}',lo=20,hi=40))
    for j in range(64): V.append(F(f'v_accvgpr_write_b32 a{A_OP+j}, 0',lo=2*64+2*j,hi=5*64))
    for x in ['v_lshrrev_b32 v28, 3, v7','v_lshlrev_b32 v28, 5, v28','v_lshrrev_b32 v26, 1, v7','v_lshlrev_b32 v26, 12, v26','v_mov_b32 v24, 0','v_mov_b32 v25, 1',
              f'v_add_u32 v18, s{S_M8}, v{V_L16}', 'v_xor_b32 v19, 8192, v18', f'v_add_u32 v18, {QX}, v18', f'v_add_u32 v19, {QX}, v19']:
        V.append(F(x,lo=30,hi=50))
    S.append(F(f's_and_b32 s{S_PF}, s{S_FL}, {0xffffffff^(31<<12):#x}',lo=30,hi=50))
    la='global_load_dword v29, v28, s[94:95] sc1'; lf=f'buffer_load_dword v27, v26, s[16:19], s{S_PF} offen sc1'
    EV.append((64+31,F(I(la,tag=('K','arr')),lo=64+31)))
    pre[pub*64+49]+=[f'buffer_store_dword v25, v24, s[16:19], s{S_FL} offen sc1']+spin('F_AW',la,'v_cmp_gt_u32 vcc, 32, v29')
    gl=OPT['pollg']
    EV.append((gl,F(I(lf,tag=('K','fl')),lo=gl,hi=gl+1)))
    pre[5*64+49]+=spin('F_P1',lf,'v_cmp_gt_u32 vcc, 1, v27')
    T=S_T
    def bg(ops,lo,need):
        for x in ops: G.append(F(x,lo=lo))
        marks.append((G[-1].i,need))
    cs=kv_offsets()+[f's_mov_b32 s{S_PASS}, 0',
        's_and_b32 s38, s2, 7','s_lshl_b32 s38, s38, 5','s_lshr_b32 s39, s2, 3','s_add_u32 s38, s38, s39',
        's_lshl_b32 s32, s38, 14', f's_add_u32 s32, s32, {phasey.WS_U}', f's_add_u32 s32, s32, s{S_W4K}', 's_add_u32 s33, s32, 4',
        f's_lshr_b32 s39, s{S_WAVE}, 1', f's_and_b32 s40, s{S_WAVE}, 1', f's_mul_i32 s35, s39, {UCH}', f's_add_u32 s35, s35, {UB}', f's_mul_i32 s34, s40, {CS}', 's_add_u32 s34, s34, s35',
        f's_mul_i32 s41, s39, {HCH}', f's_add_u32 s41, s41, {HBASE}',
        's_lshl_b32 s88, s38, 13', f's_lshl_b32 s42, s{S_WAVE}, 11', 's_add_u32 s88, s88, s42', f's_add_u32 s100, s88, {phasey.WS_Z}', 's_mov_b32 s26, s89',
        'v_and_b32 v20, 3, v7', f'v_mul_u32_u24 v20, {CS}, v20', 'v_bfe_u32 v21, v7, 2, 1', 'v_lshl_add_u32 v20, v21, 4, v20', 's_add_u32 s42, s35, 4096', 'v_add_u32 v20, s42, v20',
        's_sub_u32 s42, s41, 512', f'v_add_u32 v21, s42, v{V_L16}', 'v_cmp_gt_u32 s[44:45], 32, v7', 's_lshl_b32 s42, s40, 11', 's_add_u32 s42, s42, s41', 'v_and_b32 v16, 3, v7', 'v_cndmask_b32 v20, v21, v20, s[44:45]',
        f'v_add_u32 v21, s42, v{V_L16}',
        'v_sub_u32 v16, 3, v16', f'v_mul_u32_u24 v16, {CS}, v16', 'v_lshrrev_b32 v0, 5, v7', 'v_lshlrev_b32 v17, 2, v0', 'v_bfe_u32 v22, v7, 2, 2', 'v_add_u32 v17, v17, v22',
        'v_bfe_u32 v22, v7, 4, 1', 'v_lshlrev_b32 v31, 1, v22', 'v_sub_u32 v17, v31, v17', 'v_add_u32 v17, 39, v17', 's_lshl_b32 s42, s40, 5', 'v_subrev_u32 v17, s42, v17',
        'v_lshl_add_u32 v16, v17, 3, v16', 'v_add_u32 v16, s35, v16',
        'v_and_b32 v17, 15, v7', 'v_sub_u32 v17, v17, v0', 'v_lshlrev_b32 v17, 5, v17', 'v_lshl_add_u32 v17, v22, 4, v17',
        's_lshl_b32 s42, s40, 8', 's_sub_u32 s42, s41, s42', f's_add_u32 s42, s42, {512-192}', 'v_add_u32 v17, s42, v17',
        'v_and_b32 v0, 15, v7','v_lshlrev_b32 v0, 2, v0','v_lshrrev_b32 v22, 4, v7','v_add_u32 v0, v0, v22', f's_lshl_b32 s42, s{S_WAVE}, 7', 'v_add_u32 v0, s42, v0',
        f'v_sub_u32 v0, {511-64}, v0','v_lshlrev_b32 v0, 3, v0', f'v_add_u32 v0, {UB}, v0',
        's_mul_i32 s42, s39, 98304', 's_lshl_b32 s43, s40, 13', 's_add_u32 s42, s42, s43', 's_add_u32 s42, s42, 49152', f'v_add_u32 v22, s42, v{V_L16}']
    bg(cs,2*64,5*64+40)
    bg(['s_mov_b32 s94, s74','s_mov_b32 s95, s75','s_mov_b32 s8, s16','s_mov_b32 s9, s17','s_add_u32 s10, s32, 4096'],5*64,5*64+50)
    for k,g in enumerate((6*64+23,6*64+31)): EV.append((g,F(I(f'ds_write_b128 v21, a[{240+4*k}:{243+4*k}] offset:{512+k*1024}',tag=hW),lo=g,hi=g+1)))
    EV.append((6*64+37,F(I(f'ds_write_b128 v20, a[{A_OP}:{A_OP+3}]',tag=tW),lo=6*64+37,hi=6*64+38)))
    bg(att_addr()+[f's_lshl_b32 s42, s{S_WAVE}, 11', 's_add_u32 s42, s42, 49152', f'v_add_u32 v20, s42, v{V_L16}', 'v_add_u32 v21, 98304, v20'],6*64+42,7*64+10)
    gZ=7*64+OPT.get('gz',48)
    pre[gZ-1]=['s_waitcnt vmkey(cv|k0) lgkmcnt(0)']; pre[gZ]=['s_barrier']
    fa=lambda rr,j:(160 if rr%2==0 else 192)+j*4
    fb=lambda rr,m:(224 if rr%2==0 else 64)+m*4
    def ra(rr,j,h): b=fa(rr,j)+2*h; return I(f'ds_read_b64 a[{b}:{b+1}], v16 offset:{(59-8*j-rr)*64+8*h}',tag=tR)
    def rb(rr,m): b=fb(rr,m); return I(f'ds_read_b128 a[{b}:{b+3}], v17 offset:{512*m+(3-rr)*64}',tag=hR)
    ca=lambda n:64+8*n
    for rr in range(4):
        g0=len(mf)
        for n in range(8):
            for j in range(n+1):
                d=rng('v',ca(n)); mf.append(f'{MF} {d}, {rng("a",fa(rr,j))}, {rng("a",fb(rr,n-j))}, {"0" if (rr==0 and j==0) else d}')
        rds=[]
        for j in range(8): rds+=[ra(rr,j,0),ra(rr,j,1),rb(rr,j)]
        lo=(gZ+1) if rr==0 else (g0-36+(8 if rr==1 else 2))
        for q,x in enumerate(rds): EV.append((lo+q,F(x,lo=lo+q,hi=lo+q+3)))
    NT=len(mf)
    for ds,x in enumerate(k0reads()): EV.append((NT-30+ds,F(x,lo=NT-30+ds,hi=NT-26+ds)))
    U=36
    for n in range(2):
        for ch in range(2): EV.append((NT-22+2*n+ch,F(I(f'ds_read_b64 v[{52+8*n+2*ch}:{53+8*n+2*ch}], v0 offset:{ch*UCH+512-512*n}',tag=tR),lo=NT-22+2*n+ch)))
    for b in range(4):
        for ds in range(4):
            d=rng('v',V_NM+b*4); mf.append(f'{MF} {d}, {rng("a",A_K+ds*4)}, {rng("a",qreg(b,ds))}, {"0" if ds==0 else d}')
    xW=('W','cx',None,49152,65536,True); xR=('R','cx',None,49152,65536,True)
    for n in range(8):
        g=NT-36+(n+1)*(n+2)//2-1+5
        EV.append((g,F(I(f'ds_write_b128 v22, {rng("v",ca(n))} offset:{n*1024}',tag=xW),lo=g,hi=g+2)))
    slots=[]
    for t,n in enumerate(OPT['stB']):
        slots+=[t*64+g for g in ([60,47,37,31][:n] if t<5 else {0:[],1:[39],2:[23,54],3:[15,39,60],4:[15,31,47,60],5:[7,23,37,47,60]}[n])]
    slots.sort()
    order=list(range(OPT['nstA'],16))+LATEST
    assert len(slots)>=16-OPT['nstA']
    slots+=[NB+8+(150*k)//OPT['stV'] for k in range(OPT['stV'])]
    for o,g in zip(order,slots): EV.append((g,F(kv_store(o,R(o)[1]),lo=g,hi=g+2)))
    phaseB.left=order[len(slots):]
    V.sort(key=lambda f:f.lo)
    g0=7*64
    for u in range(4):
        for a in range(4):
            lo=g0+(2*u+1)*8+a*2+1+5
            k0,r0=qacc(a,2*u); k1,r1=qacc(a,2*u+1); ops=[]
            if k0=='a':
                for j in range(4): V.append(F(f'v_accvgpr_read_b32 v{R(4+a)[1]+j}, a{r0+j}',lo=lo,hi=gZ-2))
                r0=R(4+a)[1]
            ops+=[f'v_mul_f32 v{r+j}, s{S_C}, v{r+j}' for r in (r0,r1) for j in range(4)]
            ops+=[f'v_cvt_pk_bf16_f32 v{r0+j}, v{src}, v{src+1}' for j,src in enumerate((r0,r0+2,r1,r1+2))]
            ops+=[f'v_accvgpr_write_b32 a{qreg(a,u)+j}, v{r0+j}' for j in range(4)]
            if a<2: ops.append(I(f'ds_write_b128 v18, v[{r0}:{r0+3}] offset:{(a*4+u)*1024}',tag=('W','qx',None,QX,QX+32768,True)))
            for x in ops: V.append(F(x,lo=lo,hi=NT-24))
    for x in masks()+att_misc(): V.append(F(x,lo=NB))
    EV.sort(key=lambda e:e[0]); S.sort(key=lambda f:f.lo)
    D=[e[1] for e in EV]
    for Q in (V,D,S):
        for j in range(len(Q)-2,-1,-1): Q[j].hi=max(min(Q[j].hi,Q[j+1].hi),Q[j].lo)
    code,over=schedule(mf,V,D,S,pre,G)
    for x,lim in marks:
        k=[j for j,y in enumerate(code) if y is x][0]; ng=sum(y.kind=='mfma' for y in code[:k])
        assert ng<=lim,(x.text,ng,lim)
    lo=lambda d,s: f'v_lshlrev_b32 v{d}, 16, v{s}'
    hi=lambda d,s: f'v_and_b32 v{d}, 0xffff0000, v{s}'
    t=['s_waitcnt lgkmcnt(0)','s_barrier']
    vd=dma_ops('v',0,1); t+=vd[0][0]
    for a in range(2):
        for u in range(4): t.append(I(f'ds_read_b128 {rng("a",qreg(4+a,u))}, v19 offset:{(a*4+u)*1024}',tag=('R','qx',None,QX,QX+32768,True)))
    t+=[x for _,x in vd]
    for n in range(2):
        for w in range(4): t.append(I(f'ds_read_b128 v[{64+(n*4+w)*4}:{67+(n*4+w)*4}], v{20 if w<2 else 21} offset:{(w&1)*8192+n*1024}',tag=xR))
    t+=phasey.wd_calc(100)+warm_calc(100)+qt_calc()
    for b in (4,5):
        for ds in range(4):
            d=rng('v',V_NM+b*4); t.append(f'{MF} {d}, {rng("a",A_K+ds*4)}, {rng("a",qreg(b,ds))}, {"0" if ds==0 else d}')
    t+=['s_lshl_b32 s100, s101, 16' if False else 'v_mov_b32 v98, s26', hi(97,98), lo(96,98)]
    for n in range(2):
        for r in range(4):
            for ch in range(2):
                y=64+(n*4+2*ch)*4+r; ur=3-r
                t+=[f'v_add_f32 v{y}, v{y}, v{y+4}', (lo if ur%2==0 else hi)(98,52+8*n+2*ch+ur//2), f'v_fmac_f32 v{y}, v98, v{96+ch}']
            y=64+n*16+r
            t+=[f'v_cvt_pk_bf16_f32 v{y}, v{y}, v{y+8}']
        t+=[I(f'buffer_store_dwordx4 v[{64+n*16}:{67+n*16}], v{V_L16}, s[16:19], s100 offen offset:{n*1024} sc1',tag=('K','z'))]
    aq=after_q(); k=[j for j,x in enumerate(aq) if isinstance(x,str) and x.startswith('s_cmp_eq_u32')][0]
    t+=aq[k:]
    return code+parse(t),over
def touch_setup():
    S=S_T
    return [f's_and_b32 s9, s{S_H}, 28', 's_lshl_b32 s9, s9, 17', f's_and_b32 s{S}, s{S_H}, 3', f's_lshl_b32 s{S}, s{S}, 8', f's_add_u32 s9, s9, s{S}', f's_lshl_b32 s{S}, s{S_WAVE}, 10', f's_add_u32 s9, s9, s{S}',
            f's_lshl_b32 s{S}, s{S_I}, 3', f's_sub_u32 s{S}, s{S}, 32', f's_lshr_b32 s10, 0x00060b0f, s{S}', 's_and_b32 s10, s10, 0xff', f's_cmp_lt_u32 s{S_I}, 4', 's_cselect_b32 s10, 16, s10']
def kvt_base(S,d):
    return [f's_lshl_b32 s{S}, s{S}, 14', f's_lshl_b32 s{S+1}, s{S_H}, 19', f's_add_u32 s{S}, s{S}, s{S+1}', f's_and_b32 s{S+1}, s{S_WAVE}, 1', f's_lshl_b32 s{S+1}, s{S+1}, 13', f's_add_u32 s{S}, s{S}, s{S+1}',
            f's_lshr_b32 s{S+1}, s{S_WAVE}, 1', f's_lshl_b32 s{S+1}, s{S+1}, 24', f's_add_u32 s{d}, s{S}, s{S+1}']
def once(name,ops,it,gcmp,gbr,post=False,setflag=False):
    SIDE.extend([f'{name}_O:']+ops+(['s_mov_b32 s8, 1'] if setflag else [])+[f's_branch {name}_B'])
    it.setdefault('vev',[]).append((gcmp,'s_cmp_eq_u32 s8, 0'))
    br=[f's_cbranch_scc1 {name}_O',f'{name}_B:']
    if post: it.setdefault('post_bar',[]).extend(br)
    else: it['vev'].extend([(gbr,x) for x in br])
def hooks(name,iters):
    lf=f'buffer_load_dword v9, v8, s[16:19], s{S_PF} offen sc1'
    pub2=f'buffer_store_dword v11, v10, s[16:19], s{S_FL} offen sc1'
    left=phaseB.left
    late=[o for o in left if (o&3)>=2][-OPT['st0']:] if OPT['st0'] else []
    early=[o for o in left if o not in late]
    for it in iters:
        u=it['u']
        if name in ('PRO','MID0'):
            if u==-1:
                it['dev']=[(2+(46*k)//max(len(early),1),kv_store(o,R(o)[1])) for k,o in enumerate(early)]; it['vm']=len(early)+2
            if u==0:
                g0=27 if name=='MID0' else 11
                it['dev']=[(g0+(56*k)//len(late)//4*4,kv_store(o,R(o)[1])) for k,o in enumerate(late)]; it['vm']=len(late)
        if u==1 and name=='L1': once('F_H1',[pub2],it,99,None,post=True)
        if u==1 and name in ('MID','MID0'): it['post_bar']=[pub2]
        if (u==2 and name=='L1') or (u==0 and name=='L2'):
            once(f'F_H2{name}',[lf],it,56,57)
            extra=[]
            if name=='L1' and OPT['kvtouch']:
                S=S_T
                extra=[f'v_lshlrev_b32 v9, 3, v{V_L16}', f's_sub_u32 s{S}, {OPT["kvt0"]+7-4}, s{S_I}']+kvt_base(S,4)+[f's_cmp_lt_u32 s{S_I}, 4', 's_cselect_b32 s4, 0x40000000, s4',
                       f's_lshl_b32 s5, s{S_H}, 19', f's_add_u32 s5, s5, {1<<19}', f's_lshr_b32 s{S}, s{S_WAVE}, 1', f's_lshl_b32 s{S}, s{S}, 24', f's_add_u32 s5, s5, s{S}']
            once(f'F_H3{name}',['s_waitcnt vmcnt(0)']+spin(f'F_P2{name}',lf,'v_cmp_gt_u32 vcc, 2, v9')+extra,it,99,None,post=True,setflag=True)
        if name=='L1' and OPT['kvtouch']:
            it.setdefault('vev',[]).extend([(0,'s_add_u32 s4, s4, 65536'),(4,'s_cmp_lt_u32 s4, s5'),(5,'s_cselect_b32 s4, s4, 0x40000000')])
            it.setdefault('dev',[]).append((11,f'buffer_load_dword a{253+(u&1)}, v9, s[16:19], s4 offen sc1')); it['vm']=1
        if name=='PRO' and OPT['kvtouch']:
            S=S_T
            if u==-1:
                it.setdefault('vev',[]).extend([(0,x) for x in [f'v_lshlrev_b32 v9, 3, v{V_L16}', f's_add_u32 s{S}, s{S_I}, 1', f's_min_u32 s{S}, s{S}, 7']+kvt_base(S,S+2)])
                it['dev']=[(1,f'buffer_load_dword a253, v9, s[16:19], s{S+2} offen sc1')]+it['dev']; it['vm']+=1
            if u==0: it.setdefault('vev',[]).extend([(120,'s_mov_b32 s4, 0x40000000'),(121,'s_mov_b32 s5, 0')])
        if u==2 and name=='MID':
            it['dev']=[(51,lf)]; it['post_bar']=spin(f'F_P2{name}',lf,'v_cmp_gt_u32 vcc, 2, v9')+['s_mov_b32 s8, 1']
        if u==1 and name=='L1' and OPT['wotouch']:
            S=S_T
            sv=[f's_lshr_b32 s{S}, s10, 2', f's_lshl_b32 s{S}, s{S}, 17', f's_and_b32 s{S+1}, s10, 3', f's_lshl_b32 s{S+1}, s{S+1}, 12', f's_add_u32 s{S}, s{S}, s{S+1}', f's_add_u32 s{S}, s{S}, s9',
                's_cmp_lt_u32 s10, 16', f's_cselect_b32 s{S}, s{S}, 0x40000000', 's_add_u32 s10, s10, 1']
            it.setdefault('vev',[]).extend([(g,x) for g,x in zip((8,9,12,13,15,16,17,19,20),sv)])
            it.setdefault('dev',[]).extend([(23,f'buffer_load_dword a250, v8, s[12:15], s{S} offen'),(27,f'buffer_load_dword a252, v8, s[12:15], s{S} offen offset:128')])
            it['vm']=it.get('vm',0)+2; it['dev'].sort(key=lambda e:e[0])
        if OPT['qtouch'] and ((name in ('MID','MID70','MID71') and u==1) or (name=='L2' and u==0)):
            qt='global_load_dword a250, v22, s[94:95]'
            if name=='L2': SIDE.insert(SIDE.index('F_H2L2_O:')+2,qt)
            else: it.setdefault('dev',[]).append((11,qt)); it['vmkey']=True
    if name.startswith('TAIL') or name.startswith('MID7'):
        a,b,c=iters[-3],iters[-2],iters[-1]
        ss,vv=phasey.early_setup()
        g0=47 if name.startswith('TAIL') else 31
        a.setdefault('sev',[]).extend([(g0-28+2*j,x) for j,x in enumerate(ss)]); a.setdefault('vev',[]).extend([(g0-3,x) for x in vv])
        if OPT['warmT']: a['vev'].extend([(g0-5,x) for x in rewarm(9,S_T+2)])
        for it,j,nn,g in ((a,0,8,g0),(b,1,7,15)):
            for n in range(nn):
                prs,x=phasey.wo_dma(j,n,True)
                it.setdefault('sev',[]).extend([(g+4*n-3+q,p) for q,p in enumerate(prs)]); it.setdefault('dev',[]).append((g+4*n,x))
            it['vmkey']=True
        if name.startswith('TAIL'):
            P=phasey
            a['vev'].extend([(40,x) for x in ['s_waitcnt vmcnt(10)', f'v_mov_b32 v11, s{P.S_OK}']]); a['dev'].append((43,pub2)); a['dev'].sort(key=lambda e:e[0])
            for j,x in enumerate(P.pc_setup()+P.cx_setup((2,3),S_T)): a['sev'].append((80+j,x))
            gp=OPT.get('tp',34); gc=OPT.get('tc',66)
            b.setdefault('vev',[]).extend([(gp-3,'v_lshrrev_b32 v8, 4, v7'),(gp-2,'v_lshlrev_b32 v8, 12, v8')])
            b['dev'].append((gp,I(f'buffer_load_dword v9, v8, s[16:19], s{P.S_PC} offen sc1',tag=('K','p3'))))
            b['vev'].extend([(gc,x) for x in ['s_waitcnt vmkey(p3)','v_cmp_gt_u32 vcc, 3, v9']])
            b['vev'].extend([(gc+1,x) for x in ['s_cmp_eq_u64 vcc, 0', f's_cselect_b32 s{P.S_EARLY}, 1, 0', f's_cselect_b32 s{S_T+2}, 0, 0x40000000', f'v_add_u32 v8, s{S_T+2}, v{V_L16}']])
            lst=[(j,bb,u) for j in P.SORD for bb in (2,3) for u in range(4)]
            nb=(103-(gc+3))//3+1
            for q,(j,bb,u) in enumerate(lst):
                if q<nb: b['dev'].append((gc+3+3*q,P.cload(bb,j,u,8)))
                else: c.setdefault('dev',[]).append((1+(36*(q-nb))//(24-nb),P.cload(bb,j,u,8)))
            assert nb<=16
            b['dev'].sort(key=lambda e:e[0])
def att_addr():
    return [f'v_mov_b32 v{V_KA}, v{V_L16}', f's_and_b32 s{S_T}, s{S_WAVE}, 1', f's_lshl_b32 s{S_T}, s{S_T}, 14', f'v_add_u32 v{V_KA+1}, s{S_T}, v{V_L16}',
        f'v_add_u32 v{V_VA}, 65536, v{V_KA}', f'v_add_u32 v{V_VA+1}, 65536, v{V_KA+1}', f'v_mov_b32 v{V_NINF}, 0xff800000']
def skipcond(code):
    out=[];skip=None
    for x in code:
        if skip:
            if x.text==skip+':': skip=None
            continue
        if x.op.startswith('s_cbranch_scc') and x.ops[0].startswith('F_ARR'):
            skip=x.ops[0]; continue
        out.append(x)
    return out
def build():
    diag=OPT['diag']
    su=parse(setup())
    SIDE.clear(); WN[0]=0
    su,h0=vm_waits_skip(su,[])
    pend=su[-4:]
    A=[]
    for mat in range(2):
        c,over=phaseA(mat)
        c2,h=vm_waits_skip(c,h0); c2,p=lgkm_waits(c2,pend); c2=fix_hazards(c2)
        print(f'A{mat} est',cycles(skipcond(c2)),'over',over); A.append((c2,h,p))
    assert [x.text for x in A[0][1][-40:]]==[x.text for x in A[1][1][-40:]] or True
    b,over=phaseB()
    b0,_=vm_waits_skip(b,A[0][1]); b1,_=vm_waits_skip(b,A[1][1])
    import re
    bb=[]
    for x,y in zip(b0,b1):
        if x.text!=y.text:
            nx=int(re.search(r'vmcnt\((\d+)\)',x.text).group(1)); ny=int(re.search(r'vmcnt\((\d+)\)',y.text).group(1))
            bb.append(x if nx<ny else y)
        else: bb.append(x)
    assert [x.text for x in A[0][2]]==[x.text for x in A[1][2]]
    bb,_=lgkm_waits(bb,A[0][2]); bb=fix_hazards(bb,A[0][0][-30:]); bb=fix_hazards(bb,A[1][0][-30:])
    print('B est',cycles(skipcond(bb)),'over',over)
    aq=[]
    att=parse(['K2_ATT:']+set_negm())
    k2.OPT['slow_extra']=phasey.wd_calc(48)+warm_calc(48)+att_misc()
    B=k2.make_blocks(hooks=hooks,final_fn=lambda: phasey.final(spin))
    yc,yt,over=phasey.gemm(spin,OPT,SIDE)
    fin=skipcond(B['FIN']['code'])
    hist=[x for x in fin if x.kind=='vmem']
    _,pds=lgkm_waits(fin)
    post,_=vm_waits_skip(yc+yt,hist)
    post=keepcond(post,lambda c: vm_reg_waits(c)[0]); post,_=lgkm_waits(post,pds); post=fix_hazards(post,fin[-30:])
    print('Y est',cycles(post),'over',over,'FIN est',cycles(fin))
    full=B['FIN']['code']; B['FIN']['code']=fin
    nprob=0
    for i in range(8):
        for e in range(2):
            tr=[(x,0) for x in skipcond(su)+skipcond(A[e][0])+skipcond(bb)+aq+att]+k2.traces(B,i,e)+[(x,0) for x in skipcond(post)]
            nprob+=len(check([x for x,_ in tr],f'i{i} e{e}'))+len(lds_check(tr,f'i{i} e{e}'))
    B['FIN']['code']=full
    nprob+=len(check(A[0][0]+bb,'withcond'))+len(check(parse(SIDE),'side',idx=True))
    print('fused problems',nprob)
    out=su+parse([f's_bitcmp1_b32 s{S_WAVE}, 0','s_cbranch_scc1 F_A1'])+A[0][0]+parse(['s_branch F_B','F_A1:'])+A[1][0]+parse(['F_B:'])+bb+aq+att+k2.layout(B)
    out+=parse(['K2_POST:'])+post
    import stamp
    o2=[]
    for x in out:
        if x.text=='STAMP:':
            if diag==3: o2+=stamp.one_stamp(23,96,98)
        else: o2.append(x)
    out=o2
    if diag:
        if diag==1: out=stamp.lane_stamps(out,23,96,98)
        if diag==3:
            k=[i for i,x in enumerate(out) if x.text=='K2_FIN:'][0]
            out=out[:k]+stamp.lane_stamps(out[k:],23,96,98)
        k=[i for i,x in enumerate(out) if x.op.startswith('s_load')][0]
        out[k:k]=parse(['s_mov_b32 s98, 0'])+stamp.one_stamp(23,96,98,True)+stamp.one_stamp(23,96,98)
        k=[i for i,x in enumerate(out) if x.text=='K2_POST:'][0]
        if diag in (1,3): out[k+1:k+1]=stamp.one_stamp(23,96,98)
        out+=parse(['s_waitcnt vmcnt(0)'])+stamp.one_stamp(23,96,98)+stamp.one_stamp(23,96,98,True)+parse(['s_lshl_b64 exec, 1, 62',f'v_mov_b32 v23, s{phasey.S_EARLY}','s_mov_b64 exec, -1'])+stamp.lane_dump(23,98,S_WAVE,1,8)
    out+=parse(['s_endpgm']+SIDE+['F_END:'])
    return out
def keepcond(code,fn):
    keep=[x for x in skipcond(code)]; ids=set(id(x) for x in keep)
    res=fn(keep); out=[]; j=0
    for x in code:
        if id(x) in ids:
            while res[j] is not x: out.append(res[j]); j+=1
            j+=1
        out.append(x)
    return out
def vm_waits_skip(code,hist):
    keep=set(id(x) for x in skipcond(code))
    res,h=vm_waits([x for x in code if id(x) in keep],hist)
    it=iter(res); out=[]
    for x in code:
        out.append(next(it) if id(x) in keep else x)
    return out,h
if __name__=='__main__': build()
```

```python
from asm import I, parse, check, fix_hazards
from sched import F, schedule, lgkm_waits, cycles
from attn import *
import attn
from k1 import srd, code_warm
WS_K=0; WS_V=16<<20; WS_C=32<<20
CSCALE=0x3e0293ee
import struct, math
CSCALE=struct.unpack('<I',struct.pack('<f',math.log2(math.e)/math.sqrt(128)))[0]
S_SOX=32
S_SOW=40
S_MX=44; S_MW=45; S_C=46
S_RB=80
V_XA=8
V_WA=12
V_DX=16; V_DW=17
XB=[0,32768,65536]; WB=[131072,147456,98304]
A_X=160; A_W=224
OPT=dict(ntw='',ntx='',warm=True,stfl='')
def qacc(a,c): return 128+(c*4+a)*4
def q_dma(kind,t):
    ops=[]
    if kind=='x':
        for n in range(8):
            ops.append((I(f'buffer_load_dwordx4 v{V_DX}, s[8:11], s{S_SOX+n} offen {OPT["ntx"]} lds',tag=('W','x',t,XB[t%3],XB[t%3]+32768,False)), f's_add_u32 m0, s{S_MX}, {XB[t%3]+n*1024}'))
    else:
        for n in range(4):
            ops.append((I(f'buffer_load_dwordx4 v{V_DW}, s[12:15], s{S_SOW+n} offen {OPT["ntw"]} lds',tag=('W','wq',t,WB[t%3],WB[t%3]+16384,True)), f's_add_u32 m0, s{S_MW}, {WB[t%3]+n*1024}'))
    return ops
def q_bump(kind): return f'v_add_u32 v{V_DX}, 128, v{V_DX}' if kind=='x' else f'v_add_u32 v{V_DW}, {64*8192}, v{V_DW}'
def x_read(t,a,s):
    b=A_X+(t%2)*32+(a*2+s)*4; base=XB[t%3]
    return I(f'ds_read_b128 a[{b}:{b+3}], v{V_XA+s+(2 if base>=65536 else 0)} offset:{base%65536+a*2048}',tag=('R','x',t,base,base+32768,False))
def w_read(t,c,s,hf):
    b=A_W+(c%4)*8+s*4+2*hf
    return I(f'ds_read_b64_tr_b16 a[{b}:{b+1}], v{V_WA+c%4} offset:{WB[t%3]-98304+(c>>2)*8192+s*4096+hf*2048}',tag=('R','wq',t,WB[t%3],WB[t%3]+16384,True))

def ids():
    T=S_T
    c=[f'v_lshrrev_b32 v{V_T}, 6, v0', f'v_and_b32 v7, 63, v0', f'v_readfirstlane_b32 s{S_WAVE}, v{V_T}',
       f's_and_b32 s{S_H}, s2, 7', f's_lshl_b32 s{S_H}, s{S_H}, 2', f's_bfe_u32 s{T}, s2, 0x20003', f's_add_u32 s{S_H}, s{S_H}, s{T}',
       f's_lshr_b32 s{S_I}, s2, 5', f's_lshl_b32 s{S_W4K}, s{S_WAVE}, 12',
       f'v_lshlrev_b32 v{V_L16}, 4, v7']
    c+=[f's_sub_u32 s{T}, 15, s{S_I}', f's_lshl_b32 s{T}, s{T}, 3', f's_lshr_b32 s{T+1}, s{S_WAVE}, 1', f's_add_u32 s{T}, s{T}, s{T+1}',
        f's_and_b32 s{T+1}, s{S_WAVE}, 1', f's_lshl_b32 s{T+1}, s{T+1}, 1',
        f's_add_u32 s{S_RB}, s{T}, s{T+1}', f's_add_u32 s{S_RB+1}, s{T}, 6', f's_sub_u32 s{S_RB+1}, s{S_RB+1}, s{T+1}',
        f's_add_u32 s{S_RB+4}, s{T}, 2', f's_sub_u32 s{S_RB+4}, s{S_RB+4}, s{T+1}', f's_add_u32 s{S_RB+5}, s{T}, 4', f's_add_u32 s{S_RB+5}, s{S_RB+5}, s{T+1}',
        f's_lshl_b32 s{T}, s{S_I}, 3', f's_add_u32 s{S_RB+2}, s{T}, s{S_WAVE}', f's_add_u32 s{S_RB+3}, s{S_RB+2}, 4']
    return c

def q_setup():
    T=V_T+10; L='v7'; S=S_T
    c=[]
    for n in range(8):
        c+=[f's_lshl_b32 s{S_SOX+n}, s{S_RB+(n>>1)}, 14']
        if n&1: c+=[f's_add_u32 s{S_SOX+n}, s{S_SOX+n}, 8192']
    c+=[f's_lshr_b32 s{S}, s{S_WAVE}, 1', f's_lshl_b32 s{S}, s{S}, 18']
    for n in range(4): c+=[f's_add_u32 s{S_SOW+n}, s{S}, {(16*(n&1)+4*(n>>1))*8192}']
    c+=[f's_lshl_b32 s{S_MX}, s{S_WAVE}, 13',
        f's_and_b32 s{S}, s{S_WAVE}, 1', f's_lshl_b32 s{S}, s{S}, 13', f's_lshr_b32 s{S+1}, s{S_WAVE}, 1', f's_lshl_b32 s{S+1}, s{S+1}, 12', f's_add_u32 s{S_MW}, s{S}, s{S+1}',
        f's_mov_b32 s{S_C}, {CSCALE:#x}']
    c+=[f'v_lshrrev_b32 v{T}, 3, {L}', f'v_and_b32 v{T+1}, 6, v{T}', f'v_xor_b32 v{T+1}, v{T+1}, {L}', f'v_and_b32 v{T+1}, 7, v{T+1}',
        f'v_lshlrev_b32 v{T+1}, 4, v{T+1}', f'v_lshl_add_u32 v{V_DX}, v{T}, 10, v{T+1}']
    c+=[f'v_lshrrev_b32 v{T+1}, 2, v{T}', f'v_lshlrev_b32 v{T+1}, 3, v{T+1}', f'v_and_b32 v{T+2}, 3, v{T}', f'v_add_u32 v{T+1}, v{T+1}, v{T+2}',
        f'v_lshlrev_b32 v{V_DW}, 13, v{T+1}',
        f'v_bfe_u32 v{T+1}, {L}, 1, 2', f'v_lshrrev_b32 v{T+2}, 4, {L}', f'v_xor_b32 v{T+1}, v{T+1}, v{T+2}',
        f'v_lshl_add_u32 v{V_DW}, v{T+1}, 5, v{V_DW}', f'v_and_b32 v{T+1}, 1, {L}', f'v_lshl_add_u32 v{V_DW}, v{T+1}, 4, v{V_DW}',
        f's_lshl_b32 s{S}, s{S_H}, 8', f's_and_b32 s{S+1}, s{S_WAVE}, 1', f's_lshl_b32 s{S+1}, s{S+1}, 7', f's_add_u32 s{S}, s{S}, s{S+1}',
        f'v_add_u32 v{V_DW}, s{S}, v{V_DW}']
    return c
def q_setup2():
    T=V_T+10; L='v7'
    c=[f'v_and_b32 v{T}, 15, {L}', f'v_lshrrev_b32 v{T+1}, 4, {L}', f'v_and_b32 v{T+2}, 6, v{T}', f'v_xor_b32 v{T+1}, v{T+1}, v{T+2}',
       f'v_lshlrev_b32 v{T+1}, 4, v{T+1}', f'v_lshl_add_u32 v{V_XA}, v{T}, 7, v{T+1}', f'v_add_u32 v{V_XA}, s{S_MX}, v{V_XA}',
       f'v_xor_b32 v{V_XA+1}, 64, v{V_XA}', f'v_add_u32 v{V_XA+2}, 65536, v{V_XA}', f'v_add_u32 v{V_XA+3}, 65536, v{V_XA+1}']
    c+=[f'v_lshrrev_b32 v{T}, 2, {L}', f'v_lshlrev_b32 v{T}, 7, v{T}', f'v_and_b32 v{T+1}, 3, {L}', f'v_lshl_add_u32 v{T}, v{T+1}, 3, v{T}',
        f'v_bfe_u32 v{T+1}, {L}, 3, 2', f'v_lshl_add_u32 v{T}, v{T+1}, 5, v{T}', f'v_add_u32 v{T}, 98304, v{T}']
    for c4 in range(4): c.append(f'v_xor_b32 v{V_WA+c4}, {c4*32}, v{T}')
    c+=[f'v_mov_b32 v{V_KA}, v{V_L16}', f's_and_b32 s{S_T}, s{S_WAVE}, 1', f's_lshl_b32 s{S_T}, s{S_T}, 14', f'v_add_u32 v{V_KA+1}, s{S_T}, v{V_L16}',
        f'v_add_u32 v{V_VA}, 65536, v{V_KA}', f'v_add_u32 v{V_VA+1}, 65536, v{V_KA+1}', f'v_mov_b32 v{V_NINF}, 0xff800000']
    return c
def kv_offsets():
    T=S_T
    return [f's_lshl_b32 s{T}, s{S_H}, 19', f's_add_u32 s{T}, s{T}, s{S_W4K}', f's_sub_u32 s{S_KO}, s{T}, 16384', f's_add_u32 s{S_VO}, s{S_KO}, {WS_V}']
def flat(ops):
    c=[]
    for pre,t in ops: c+=list(pre)+[t]
    return c
QX=98304

def qproj():
    c=[]
    for kind,t in (('x',0),('w',0),('x',1),('w',1),('x',2)):
        if t>0: c.append(q_bump(kind))
        for d,m in q_dma(kind,t): c+=[m,'s_nop 0',d]
    nw=0
    if OPT['warm']:
        w,nw=code_warm('K2_END','K2_PC','v24','v25',S_T,65536); c+=w
    c+=q_setup2()+kv_offsets()
    c+=[f's_lshl_b32 s{S_T}, s{S_WAVE}, 13', f's_add_u32 s{S_T}, s{S_T}, {QX}', f'v_add_u32 v18, s{S_T}, v{V_L16}', f'v_xor_b32 v19, 8192, v18']
    c+=[f's_waitcnt vmcnt({24+nw})']
    for a in range(4):
        for s in range(2): c.append(x_read(0,a,s))
    c+=[f's_waitcnt vmcnt({12+nw}) lgkmcnt(0)','s_barrier']
    for cc in range(2):
        for s in range(2):
            for hf in range(2): c.append(w_read(0,cc,s,hf))
    pro=parse(c); pend=pro[-8:]
    mf=[];V=[];S=[];EV=[];pre={}
    for t in range(8):
        g0=t*64
        for cc in range(8):
            for a in range(4):
                for s in range(2):
                    W=A_W+(cc%4)*8+s*4; X=A_X+(t%2)*32+(a*2+s)*4; A=qacc(a,cc)
                    C='0' if (t==0 and s==0) else f'v[{A}:{A+3}]'
                    mf.append(f'{MF} v[{A}:{A+3}], a[{W}:{W+3}], a[{X}:{X+3}], {C}')
        for cc in range(8):
            tt,c2=(t,cc+2) if cc<6 else (t+1,cc-6)
            if tt<8:
                for k,(s,hf) in enumerate(((0,0),(0,1),(1,0),(1,1))):
                    g=g0+cc*8+k+(2 if cc==6 else 0)
                    EV.append((g,F(w_read(tt,c2,s,hf),lo=g)))
        if t<7:
            for k in range(8):
                g=g0+(k//2)*8+4+(k%2)*2
                EV.append((g,F(x_read(t+1,k//2,k%2),lo=g)))
            vm = 12 if t<5 else (4+8 if t==5 else 8+4)
            pre[g0+48]=[f's_waitcnt vmcnt({vm}) lgkmcnt(0)']; pre[g0+49]=['s_barrier']
        grp=[]
        if t+2<8: grp+=[('w',)+o for o in q_dma('w',t+2)]
        if t+3<8: grp+=[('x',)+o for o in q_dma('x',t+3)]
        pos=[g0-9,g0-3,g0-1]+[g0+5,g0+7,g0+13,g0+15,g0+21,g0+29,g0+36,g0+38,g0+44] if t>0 else [5,7,13,15,21,23,29,31,36,38,44,46]
        prev=None; seen=set()
        for (kind,d,m),g in zip(grp,pos):
            if kind not in seen:
                seen.add(kind); V.append(F(q_bump(kind),lo=max(g-3,0) if prev is None else prevg,hi=g-1))
            if prev is None: S.append(F(m,lo=g-2,hi=g-1))
            else: prev.post=[I(m)]
            prev=F(d,lo=g); prevg=g; EV.append((g,prev))
        if t in (6,7):
            ops = (dma_ops('k',0,1)+dma_ops('v',0,1)) if t==6 else dma_ops('k',1,1)
            prev=None
            for (prs,txt),g in zip(ops,pos):
                if prs:
                    if prev is None:
                        for j,x in enumerate(prs): S.append(F(x,lo=g-3+j,hi=g-2+j))
                    else: prev.post=[I(x) for x in prs]
                prev=F(txt,lo=g); EV.append((g,prev))
    pre[5*64+48]=['s_waitcnt vmcnt(4) lgkmcnt(0)']
    pre[6*64+48]=['s_waitcnt vmcnt(8) lgkmcnt(0)']
    for j in range(64): V.append(F(f'v_accvgpr_write_b32 a{A_OP+j}, 0',lo=5*64+j,hi=7*64))
    V.sort(key=lambda f:f.lo)
    g0=7*64; tail=[]
    for u in range(4):
        for a in range(4):
            lo=g0+(2*u+1)*8+a*2+1+5
            r0=qacc(a,2*u); r1=qacc(a,2*u+1)
            ops=[f'v_mul_f32 v{r+j}, s{S_C}, v{r+j}' for r in (r0,r1) for j in range(4)]
            ops+=[f'v_cvt_pk_bf16_f32 v{r0+j}, v{src}, v{src+1}' for j,src in enumerate((r0,r0+2,r1,r1+2))]
            ops+=[f'v_accvgpr_write_b32 a{qreg(a,u)+j}, v{r0+j}' for j in range(4)]
            if a<2: ops.append(I(f'ds_write_b128 v18, v[{r0}:{r0+3}] offset:{(a*4+u)*1024}',tag=('W','qx',None,QX,QX+32768,True)))
            for o in ops: (V if lo<len(mf)-1 else tail).append(F(o,lo=lo))
    EV.sort(key=lambda e:e[0]); S.sort(key=lambda f:f.lo)
    code,over=schedule(mf,V,[e[1] for e in EV],S,pre)
    code+=parse(['s_nop 7'])+[f.i for f in tail]
    code,_=lgkm_waits(code,pend)
    print('qproj est cycles',cycles(code),'overflow',over)
    return pro,code

def xlane(reg,tmp,op):
    return [f'v_mov_b32 v{tmp}, v{reg}','s_nop 1',f'v_permlane32_swap_b32 v{tmp}, v{reg}',f'{op} v{reg}, v{reg}, v{tmp}',
            f'v_mov_b32 v{tmp}, v{reg}','s_nop 1',f'v_permlane16_swap_b32 v{tmp}, v{reg}',f'{op} v{reg}, v{reg}, v{tmp}']
def xlane_multi(regs,tmps,op):
    c=[]
    for sw in ('v_permlane32_swap_b32','v_permlane16_swap_b32'):
        c+=[f'v_mov_b32 v{t}, v{r}' for r,t in zip(regs,tmps)]
        if len(regs)<3: c+=['s_nop 1']
        c+=[f'{sw} v{t}, v{r}' for r,t in zip(regs,tmps)]
        c+=[f'{op} v{r}, v{r}, v{t}' for r,t in zip(regs,tmps)]
    return c
def masks():
    T=V_T
    c=[f'v_and_b32 v{T}, 15, v7', f'v_lshrrev_b32 v{T+1}, 4, v7', f'v_lshlrev_b32 v{T+1}, 2, v{T+1}', f'v_sub_u32 v{T}, v{T}, v{T+1}',
       f's_lshl_b32 s{S_T}, s{S_WAVE}, 4', f'v_add_u32 v{T+1}, s{S_T}, v{T}',
       f's_lshr_b32 s{S_T}, s{S_WAVE}, 1', f's_lshl_b32 s{S_T}, s{S_T}, 4', f'v_add_u32 v{T+2}, s{S_T}, v{T}']
    for kt in range(4):
        for r in range(4):
            sm=S_MK+(kt*4+r)*2; c.append(f'v_cmp_le_i32 s[{sm}:{sm+1}], {16*kt+r}, v{T+1}')
    for hf in range(2):
        for r in range(4):
            sm=S_ML+(hf*4+r)*2; c.append(f'v_cmp_le_i32 s[{sm}:{sm+1}], {16*hf+r}, v{T+2}')
    return c
P1=lambda par,kind='plain',first=(): Step(1,par,kind,first=first)
P2=lambda par,kind='plain',e=None: Step(2,par,kind,e)
def k0reads():
    st=P1(0)
    return [I(kread(st,0,0,ds,0),tag=('R','k',0,0,16384,True)) for ds in range(4)]
def after_q():
    c=['s_waitcnt vmcnt(8) lgkmcnt(0)','s_barrier']
    c+=k0reads()
    for a in range(2):
        for u in range(4): c.append(I(f'ds_read_b128 {rng("a",qreg(4+a,u))}, v19 offset:{(a*4+u)*1024}',tag=('R','qx',None,QX,QX+32768,True)))
    c+=masks()
    for b in range(6):
        for ds in range(4):
            C='0' if ds==0 else rng('v',V_NM+b*4)
            c.append(f'{MF} {rng("v",V_NM+b*4)}, {rng("a",A_K+ds*4)}, {rng("a",qreg(b,ds))}, {C}')
    c+=[f's_cmp_eq_u32 s{S_RB+2}, 0']
    for r in range(4):
        c.append(f's_cselect_b64 s[{S_T+0}:{S_T+1}], s[{S_MK+2*r}:{S_MK+2*r+1}], -1')
        c.append(f'v_cndmask_b32 v{V_NM+8+r}, v{V_NINF}, v{V_NM+8+r}, s[{S_T}:{S_T+1}]')
    for b in range(6):
        x=V_NM+b*4
        c+=[f'v_max_f32 v{x}, v{x}, v{x+1}', f'v_max3_f32 v{x}, v{x}, v{x+2}, v{x+3}']
    c+=xlane_multi([V_NM+b*4 for b in range(6)],[V_NM+b*4+1 for b in range(6)],'v_max_f32')
    return c
def set_negm():
    c=[]
    for b in range(6):
        x=V_NM+b*4
        c+=[f'v_sub_f32 v{x+r}, 0, v{x}' for r in (3,2,1,0)]
    c+=[f'v_mov_b32 v{V_L+b}, 0' for b in range(6)]
    return c
OX=0
LX=131072
def short_epi():
    T=V_T
    c=xlane_multi([V_L+2,V_L+3],[T,T+1],'v_add_f32')
    c+=[f'v_rcp_f32 v{T}, v{V_L+2}', f'v_rcp_f32 v{T+1}, v{V_L+3}']
    c+=store_ctx(2,T)+store_ctx(3,T+1)
    return c
S_CO=86
def store_ctx(b,rinv):
    c=[]
    base=(V_OO+b*32) if b<2 else (V_OS+(b-2)*32)
    for u in range(4):
        r=base+u*8
        c+=[f'v_mul_f32 v{r+j}, v{rinv}, v{r+j}' for j in range(8)]
        c+=[f'v_cvt_pk_bf16_f32 v{r+j}, v{r+2*j}, v{r+2*j+1}' for j in range(4)]
        c+=[f'buffer_store_dwordx4 v[{r}:{r+3}], v{V_L16}, s[{SRD_WS}:{SRD_WS+3}], s{S_CO+b} offen offset:{u*1024}{OPT["stfl"]}']
    return c
def tail_extras(ulast):
    def extraV(V,iters,n):
        lo=0
        for it in iters:
            for (b,dt),g in it['o_last'].items():
                if b in (2,3): lo=max(lo,g+5)
        if lo==0 and OPT.get('mid_short'): return V
        ops=[x for x in short_epi() if not x.startswith('s_nop')]
        g0=iters[-2]['g0']; g1=iters[-2]['g1']
        if lo<=g0 and OPT.get('early_short'):
            ex=[F(x,lo=g0+(g1-g0+16)*k//len(ops),hi=g0+(g1-g0+16)*k//len(ops)+2) for k,x in enumerate(ops)]
            out=[];i=0
            for f in V:
                while i<len(ex) and ex[i].hi<=f.hi: out.append(ex[i]); i+=1
                out.append(f)
            return out+ex[i:]
        lo=max(lo,iters[-1]['g0'])
        return V+[F(x,lo=min(lo,n-1)) for x in ops]
    def extraD(iters,n):
        it=iters[-1]; ev=[]
        for b in (4,5):
            for dt in range(8):
                g=it['o_last'].get((b,dt),it['g0']-4)+5
                x=A_OP+((b-4)*8+dt)*4
                f=F(I(f'ds_write_b128 v{V_T+4}, a[{x}:{x+3}] offset:{((b-4)*8+dt)*1024}',tag=('W','ox',None,0,32768,True)),lo=min(g,n-1),hi=g+2)
                f.late = g>n-1
                ev.append((g,f))
        tail_extras.late=[f.i for g,f in sorted(ev,key=lambda e:e[0]) if f.late]
        return [(g,f) for g,f in ev if not f.late]
    return extraV,extraD
def final():
    T=V_T
    c=[]
    c+=[f'v_max3_f32 v{T+2}, v{V_L}, v{V_L+1}, v{V_L+2}', f'v_max3_f32 v{T+3}, v{V_L+3}, v{V_L+4}, v{V_L+5}',
        f'v_add_f32 v{T+2}, v{T+2}, v{T+3}',
        I(f'ds_write_b64 v{T+6}, v[{V_L+4}:{V_L+5}]',tag=('W','lx',None,LX,LX+8192,True)),
        f'v_cmp_nle_f32 vcc, v{T+2}, v{T+7}',
        f'v_mov_b32 v{T+3}, s{S_WAVE}', f'v_lshlrev_b32 v{T+3}, 2, v{T+3}',
        f's_cmp_lg_u64 vcc, 0', f's_cselect_b32 s{S_T}, 1, 0', f'v_mov_b32 v{T+2}, s{S_T}',
        f'v_add_u32 v{T+3}, {LX+4096}, v{T+3}',
        I(f'ds_write_b32 v{T+3}, v{T+2}',tag=('W','lx',None,LX,LX+8192,True)),
        's_waitcnt lgkmcnt(0)','s_barrier']
    c+=[f'v_xor_b32 v{T+6}, 512, v{T+6}', f'v_mov_b32 v{T+3}, {LX+4096}',
        I(f'ds_read_b64 v[{V_L+4}:{V_L+5}], v{T+6}',tag=('R','lx',None,LX,LX+8192,True)),
        I(f'ds_read_b128 v[{V_S}:{V_S+3}], v{T+3}',tag=('R','lx',None,LX,LX+8192,True))]
    for j in range(16):
        c.append(I(f'ds_read_b128 v[{V_P+4*j}:{V_P+4*j+3}], v{T+5} offset:{j*1024}',tag=('R','ox',None,OX,OX+65536,True)))
        if j==11: c+=['s_waitcnt lgkmcnt(12)', f'v_or3_b32 v{V_S}, v{V_S}, v{V_S+1}, v{V_S+2}', f'v_or_b32 v{V_S}, v{V_S}, v{V_S+3}',
                      f'v_add_f32 v{V_L}, v{V_L}, v{V_L+4}', f'v_add_f32 v{V_L+1}, v{V_L+1}, v{V_L+5}', f'v_readfirstlane_b32 s{S_T}, v{V_S}']
    c+=xlane_multi([V_L,V_L+1],[T,T+1],'v_add_f32')
    c+=[f'v_rcp_f32 v{T}, v{V_L}', f'v_rcp_f32 v{T+1}, v{V_L+1}']
    c+=[f's_andn2_b32 s{S_T}, s{S_T}, s{S_PASS}', 's_cbranch_scc1 K2_SLOW']
    for b in range(2):
        sc=store_ctx(b,T+b)
        for u in range(4):
            r=V_OO+b*32+u*8
            c+=[f'v_add_f32 v{r+j}, v{r+j}, v{V_P+b*32+u*8+j}' for j in range(8)]
            c+=sc[u*13:(u+1)*13]
    return c
def tail_setup():
    T=V_T
    c=[f's_lshl_b32 s{S_T}, s{S_WAVE}, 14', f'v_add_u32 v{T+4}, s{S_T}, v{V_L16}', f'v_xor_b32 v{T+5}, 16384, v{T+4}',
       f's_lshl_b32 s{S_T}, s{S_WAVE}, 9', f's_add_u32 s{S_T}, s{S_T}, {LX}', f'v_lshrrev_b32 v{T+6}, 1, v{V_L16}', f'v_add_u32 v{T+6}, s{S_T}, v{T+6}',
       f'v_mov_b32 v{T+7}, 0x5d800000']
    for b in range(4):
        c+=[f's_lshl_b32 s{S_CO+b}, s{S_RB+b}, 17', f's_lshl_b32 s{S_T}, s{S_H}, 12', f's_add_u32 s{S_CO+b}, s{S_CO+b}, s{S_T}', f's_add_u32 s{S_CO+b}, s{S_CO+b}, {WS_C}']
    return c
def slow():
    T=V_P
    c=['K2_SLOW:','s_waitcnt vmcnt(0) lgkmcnt(0)','s_barrier', f's_mov_b32 s{S_PASS}, 1']+[f's_mov_b32 s{n}, 0x40000000' for n in range(4,8)]+masks()+OPT.get('slow_extra',[])
    for b in range(6): c+=[f'v_mov_b32 v{V_NM+b*4}, v{V_NINF}']
    c+=[f'v_and_b32 v{T}, 15, v7', f'v_lshrrev_b32 v{T+1}, 4, v7', f'v_lshlrev_b32 v{T+1}, 2, v{T+1}', f'v_sub_u32 v{T}, v{T}, v{T+1}']
    for b in range(6): c+=[f's_lshl_b32 s{S_T}, s{S_RB+b}, 4', f'v_add_u32 v{T+2+b}, s{S_T}, v{T}']
    c+=[f's_lshl_b32 s{S_KO}, s{S_H}, 19', f's_sub_u32 s{S_CNT}, 16, s{S_I}', f's_lshl_b32 s{S_CNT}, s{S_CNT}, 3', 'K2_SLOWL:']
    for ds in range(4): c.append(f'buffer_load_dwordx4 {rng("a",A_K+ds*4)}, v{V_L16}, s[{SRD_WS}:{SRD_WS+3}], s{S_KO} offen offset:{ds*1024}{attn.DMAFL}')
    c.append('s_waitcnt vmcnt(0)')
    for b in range(6):
        for ds in range(4):
            C='0' if ds==0 else rng('v',T+16+b*4)
            c.append(f'{MF} {rng("v",T+16+b*4)}, {rng("a",A_K+ds*4)}, {rng("a",qreg(b,ds))}, {C}')
    c.append('s_nop 7')
    for b in range(6):
        for r in range(4):
            c+=[f'v_cmp_le_i32 vcc, {r}, v{T+2+b}','s_nop 1',f'v_cndmask_b32 v{T+16+b*4+r}, v{V_NINF}, v{T+16+b*4+r}, vcc', f'v_max_f32 v{V_NM+b*4}, v{V_NM+b*4}, v{T+16+b*4+r}']
        c+=[f'v_subrev_u32 v{T+2+b}, 16, v{T+2+b}']
    c+=[f's_add_u32 s{S_KO}, s{S_KO}, 4096', f's_sub_u32 s{S_CNT}, s{S_CNT}, 1', f's_cmp_lg_u32 s{S_CNT}, 0', 's_cbranch_scc1 K2_SLOWL']
    c+=xlane_multi([V_NM+b*4 for b in range(6)],[V_NM+b*4+1 for b in range(6)],'v_max_f32')
    c+=[f'v_accvgpr_write_b32 a{A_OP+j}, 0' for j in range(64)]
    c+=kv_offsets()
    for kind,u in (('k',0),('v',0),('k',1)):
        for pre,t in dma_ops(kind,u,1): c+=list(pre)+[t]
    c+=['s_waitcnt vmcnt(8)','s_barrier']+k0reads()+['s_waitcnt lgkmcnt(0)','s_branch K2_ATT']
    return c

def make_blocks(final_fn=None, hooks=None):
    final_fn = final_fn or final
    B={}
    ALL=(0,1,2,3)
    def mk(name,iters,entry,**kw):
        if hooks: hooks(name,iters)
        code,pend,carry,over=block(iters,entry,name=name,**kw)
        B[name]=dict(code=code,pend=pend,carry=carry,over=over)
        return B[name]
    def shift(carry,d):
        out=[]
        for pre,x in carry:
            t=list(x.tag); t[2]+=d; out.append((pre,I(x.text,tag=tuple(t))))
        return out
    d11=[('k',1),('v',1)]; d21=[('k',2),('v',1)]; d22=[('k',2),('v',2)]
    b=mk('PRO',[dict(u=-1,qk=P1(0),pv=None,nk=P1(1),nv=P1(0),dma=d11),
                dict(u=0,qk=P1(1),pv=P1(0,first=ALL),nk=P1(0),nv=P1(1),dma=d11)],None)
    c1=b['carry']; p1=b['pend']
    loopS=[f's_sub_u32 s{S_CNT}, s{S_CNT}, 1', f's_cmp_lg_u32 s{S_CNT}, 0']
    b=mk('L1',[dict(u=1,qk=P1(0),pv=P1(1),nk=P1(1),nv=P1(0),dma=d11,carry=c1),
               dict(u=2,qk=P1(1),pv=P1(0),nk=P1(0),nv=P1(1),dma=d11)],p1,loopS=loopS)
    assert b['pend']==p1 and [x[1].text for x in b['carry']]==[x[1].text for x in c1]
    b=mk('MID',[dict(u=1,qk=P1(0,'A'),pv=P1(1),nk=P1(1,'B'),nv=P1(0,'A'),dma=d21,carry=c1),
                dict(u=2,qk=P1(1,'B'),pv=P1(0,'A'),nk=P2(0),nv=P1(1,'B'),dma=d22),
                dict(u=3,qk=P2(0),pv=P1(1,'B'),nk=P2(1),nv=P2(0),dma=d22)],p1)
    c2=shift(b['carry'],-4); p2=b['pend']
    b=mk('MID0',[dict(u=-1,qk=P1(0,'A'),pv=None,nk=P1(1,'B'),nv=P1(0,'A'),dma=d21),
                dict(u=0,qk=P1(1,'B'),pv=P1(0,'A',first=ALL),nk=P2(0),nv=P1(1,'B'),dma=d22),
                dict(u=1,qk=P2(0),pv=P1(1,'B'),nk=P2(1),nv=P2(0),dma=d22)],None)
    assert b['pend']==p2
    b=mk('L2',[dict(u=0,qk=P2(1),pv=P2(0),nk=P2(0),nv=P2(1),dma=d22,carry=c2),
               dict(u=1,qk=P2(0),pv=P2(1),nk=P2(1),nv=P2(0),dma=d22)],p2,loopS=loopS)
    assert b['pend']==p2
    for e in range(2):
        L=lambda: P2(0,'L',e)
        eV,eD=tail_extras(16)
        mk(f'TAIL{e}',[dict(u=0,qk=P2(1),pv=P2(0),nk=L(),nv=P2(1),dma=[('v',2)],carry=c2),
                       dict(u=1,qk=L(),pv=P2(1),nk=None,nv=L(),tailpv=1),
                       dict(u=2,qk=None,pv=L(),bar=False)],p2,extraV=eV,extraD=eD)
        B[f'TAIL{e}']['code']+=parse(['s_nop 3']+tail_extras.late)
        mk(f'MID7{e}',[dict(u=1,qk=P1(0,'A'),pv=P1(1),nk=P1(1,'B'),nv=P1(0,'A'),dma=d21,carry=c1),
                dict(u=2,qk=P1(1,'B'),pv=P1(0,'A'),nk=L(),nv=P1(1,'B'),dma=[('v',2)]),
                dict(u=3,qk=L(),pv=P1(1,'B'),nk=None,nv=L(),tailpv=1),
                dict(u=4,qk=None,pv=L(),bar=False)],p1,extraV=eV,extraD=eD)
        B[f'MID7{e}']['code']+=parse(['s_nop 3']+tail_extras.late)
    if OPT.get('mid_short'):
        for nm in ('MID','MID0'): B[nm]['code']+=parse(OPT['mid_short']())
    def tailds(code):
        _,p=lgkm_waits(code); return p
    pp1=tailds(B['L1']['code']); pp2=tailds(B['L2']['code'])
    for nm,pe in (('PRO',[]),('MID0',[]),('L1',pp1),('MID',pp1),('MID70',pp1),('MID71',pp1),('L2',pp2),('TAIL0',pp2),('TAIL1',pp2)):
        B[nm]['code'],_=lgkm_waits(B[nm]['code'],pe)
        B[nm]['code']=fix_hazards(B[nm]['code'])
        c=B[nm]['code']
        print(f'{nm}: mfma {sum(x.kind=="mfma" for x in c)} insts {len(c)} overflow {B[nm]["over"]} est {cycles(c)}')
    fin,_=lgkm_waits(parse(final_fn())); B['FIN']=dict(code=fix_hazards(fin))
    return B
def traces(B,i,e):
    tr=[]
    add=lambda nm,base: tr.extend((x,base) for x in B[nm]['code'])
    if i==0: add('MID0',0); u=2
    else:
        add('PRO',0); u=1
        for _ in range(i-1): add('L1',u-1); u+=2
        if i==7: add(f'MID7{e}',u-1); u=None
        else: add('MID',u-1); u+=3
    if u is not None:
        for _ in range(6-i): add('L2',u); u+=2
        assert u==14
        add(f'TAIL{e}',u)
    add('FIN',0)
    return tr
def layout(B):
    endw=['s_branch K2_FIN']
    out=parse([f's_cmp_eq_u32 s{S_I}, 0','s_cbranch_scc1 K2_MID0'])
    out+=B['PRO']['code']
    out+=parse([f's_sub_u32 s{S_CNT}, s{S_I}, 1', f's_cmp_eq_u32 s{S_CNT}, 0','s_cbranch_scc1 K2_MID','.p2align 3','K2_L1:'])+B['L1']['code']+parse(['s_cbranch_scc1 K2_L1'])
    out+=parse([f's_cmp_eq_u32 s{S_I}, 7','s_cbranch_scc1 K2_MID7','K2_MID:'])+B['MID']['code']
    out+=parse(['K2_P2:', f's_sub_u32 s{S_CNT}, 6, s{S_I}', f's_cmp_eq_u32 s{S_CNT}, 0','s_cbranch_scc1 K2_TAIL','.p2align 3','K2_L2:'])+B['L2']['code']+parse(['s_cbranch_scc1 K2_L2'])
    out+=parse(['K2_TAIL:', f's_bitcmp1_b32 s{S_WAVE}, 0','s_cbranch_scc1 K2_TAIL1'])+B['TAIL0']['code']+parse(endw)
    side=parse(['K2_MID0:'])+B['MID0']['code']+parse(['s_branch K2_P2'])
    side+=parse(['K2_MID7:', f's_bitcmp1_b32 s{S_WAVE}, 0','s_cbranch_scc1 K2_MID71'])+B['MID70']['code']+parse(endw)
    side+=parse(['K2_MID71:'])+B['MID71']['code']+parse(endw)
    side+=parse(slow())
    out+=side+parse(['K2_TAIL1:'])+B['TAIL1']['code']+parse(['K2_FIN:'])+B['FIN']['code']
    return out
```

```python
from asm import I, parse
from sched import F, schedule, lgkm_waits, vm_waits, vm_reg_waits, cycles
from attn import *
import k2
from k2 import S_RB, S_CO, xlane_multi, WS_C
WS_U=48<<20
WS_Z=56<<20
WS_P=64<<20
WS_F=60<<20
S_FL=99
WJ=[131072,32768,65536,0]
V_WD=0
S_WM=52; S_WO=53
S_HP=54
S_MB=4
ST=' sc1'
def wo_dma(j,n,early):
    sm,so,hp=(4,5,6+j) if early else (S_WM,S_WO,S_HP+j)
    lo=WJ[j]
    return ([f's_add_u32 m0, s{sm}, {lo+n*1024}', f's_add_u32 s{so}, s{hp}, {n*8192}'],
            I(f'buffer_load_dwordx4 v{V_WD}, s[12:15], s{so} offen lds',tag=('W',f'wo{j}' if not (j==1 and n==7) else 'wo1',None,lo,lo+32768,True)))
def early_setup():
    T=S_T
    s=[f's_and_b32 s{T}, s{S_WAVE}, 1', f's_lshl_b32 s{T}, s{T}, 14', f's_lshr_b32 s4, s{S_WAVE}, 1', 's_lshl_b32 s4, s4, 13', f's_add_u32 s4, s4, s{T}',
       f's_lshl_b32 s6, s{S_H}, 17', f's_add_u32 s{T}, s{S_H}, 1', f's_and_b32 s{T}, s{T}, 3', f's_and_b32 s7, s{S_H}, 28', f's_add_u32 s7, s7, s{T}', 's_lshl_b32 s7, s7, 17']
    v=['v_accvgpr_read_b32 v0, a248']
    return s,v
def wd_calc(T):
    S=S_T; L='v7'
    return [f'v_lshrrev_b32 v{T}, 3, {L}', f'v_lshlrev_b32 v{T}, 10, v{T}', f'v_bfe_u32 v{T+1}, {L}, 1, 2', f'v_lshrrev_b32 v{T+2}, 4, {L}', f'v_xor_b32 v{T+1}, v{T+1}, v{T+2}',
        f'v_lshl_add_u32 v{T}, v{T+1}, 5, v{T}', f'v_and_b32 v{T+1}, 1, {L}', f'v_lshl_add_u32 v{T}, v{T+1}, 4, v{T}',
        f's_and_b32 s{S}, s{S_H}, 3', f's_lshl_b32 s{S}, s{S}, 8', f's_and_b32 s{S+1}, s{S_WAVE}, 1', f's_lshl_b32 s{S+1}, s{S+1}, 7', f's_add_u32 s{S}, s{S}, s{S+1}',
        f's_lshr_b32 s{S+1}, s{S_WAVE}, 1', f's_lshl_b32 s{S+1}, s{S+1}, 16', f's_add_u32 s{S}, s{S}, s{S+1}', f'v_add_u32 v{T}, s{S}, v{T}', f'v_accvgpr_write_b32 a248, v{T}',
        's_mov_b32 s12, s90', 's_and_b32 s13, s91, 0xffff']
def tail_setup():
    T=V_T; S=S_T
    c=[f's_lshr_b32 s{S}, s{S_WAVE}, 1', f's_mul_i32 s{S+1}, s{S}, 98304', f's_and_b32 s{S+2}, s{S_WAVE}, 1', f's_lshl_b32 s{S+2}, s{S+2}, 14', f's_add_u32 s{S+1}, s{S+1}, s{S+2}',
       f'v_add_u32 v{T+4}, s{S+1}, v{V_L16}', f'v_xor_b32 v{T+5}, 16384, v{T+4}',
       f's_lshl_b32 s{S}, s{S}, 13', f's_add_u32 s{S}, s{S}, s{S+2}', f's_add_u32 s{S}, s{S}, {32768+7168}', f'v_lshrrev_b32 v{T+6}, 1, v{V_L16}', f'v_add_u32 v{T+6}, s{S}, v{T+6}',
       f'v_mov_b32 v{T+7}, 0x5d800000']
    for b in range(4):
        c+=[f's_lshl_b32 s{S_CO+b}, s{S_RB+b}, 17', f's_lshl_b32 s{S}, s{S_H}, 12', f's_add_u32 s{S_CO+b}, s{S_CO+b}, s{S}', f's_add_u32 s{S_CO+b}, s{S_CO+b}, {WS_C}']
    return c
S_EARLY=101; S_OK=100
def flag(val,vd,va): return [f'v_mov_b32 v{vd}, {val}', f'buffer_store_dword v{vd}, v{va}, s[16:19], s{S_FL} offen sc1']
def own(b,u): return (V_OO+b*32+u*8)
def acc(b,c):
    if b<2: return ('v',V_P+(b*8+c)*4)
    if b==2: return ('v',132+c*8)
    return ('a',192+c*4)
def peer(b,j,u):
    k=(b&1)*4+u
    if b<2: return ('a',64+((j-1)*8+k)*4)
    return {1:('v',196+k*8),2:('a',224+k*4),3:('a',160+k*4)}[j]
VW=24
def w_read(j,c,u,hf,slot):
    b=(slot%4)*16+u*4+2*hf
    v=VW+(c&3)+(4 if j==2 else 0)
    off=(32768 if j==1 else 0)+(c>>2)*16384+u*4096+hf*2048
    return I(f'ds_read_b64_tr_b16 a[{b}:{b+1}], v{v} offset:{off}',tag=('R',f'wo{j}',None,WJ[j],WJ[j]+32768,True))
S_CX=32
S_PC=44
def cx_setup(blks,tmp):
    c=[]
    for j in (1,2,3):
        c+=[f's_add_u32 s{tmp}, s{S_H}, {j}', f's_and_b32 s{tmp}, s{tmp}, 3', f's_and_b32 s{tmp+1}, s{S_H}, 3', f's_sub_u32 s{tmp}, s{tmp}, s{tmp+1}', f's_lshl_b32 s{tmp}, s{tmp}, 12']
        for b in blks: c.append(f's_add_u32 s{S_CX+b*3+j-1}, s{S_CO+b}, s{tmp}')
    return c
def pc_setup(): return [f's_and_b32 s{S_PC}, s{S_FL}, {0xffffffff^(3<<12):#x}']
def cload(b,j,u,va): return f'buffer_load_dwordx4 {rng(*peer(b,j,u))}, v{va}, s[16:19], s{S_CX+b*3+j-1} offen offset:{u*1024} sc1'
SORD=(2,1,3)
def mid_short():
    T=V_S
    c=['s_nop 7']+xlane_multi([V_L+2,V_L+3],[T,T+1],'v_add_f32')
    c+=[f'v_rcp_f32 v{T}, v{V_L+2}', f'v_rcp_f32 v{T+1}, v{V_L+3}', f'v_add_f32 v{T+2}, v{V_L+2}, v{V_L+3}', f'v_cmp_nle_f32 vcc, v{T+2}, v{V_T+7}']
    c+=k2.store_ctx(2,T)+[f's_cmp_eq_u64 vcc, 0', f's_cselect_b32 s{S_OK}, 3, 2', f's_or_b32 s{S_OK}, s{S_OK}, s{S_PASS}']+k2.store_ctx(3,T+1)
    return c

def final(spin):
    T=V_T; S=S_T
    lxW=('W','lx',None,163840,163841,True); lxR=('R','lx',None,163840,163841,True)
    c=[f'v_max3_f32 v{T+2}, v{V_L}, v{V_L+1}, v{V_L+2}', f'v_max3_f32 v{T+3}, v{V_L+3}, v{V_L+4}, v{V_L+5}', f'v_add_f32 v{T+2}, v{T+2}, v{T+3}',
       I(f'ds_write_b64 v{T+6}, v[{V_L+4}:{V_L+5}]',tag=lxW),
       f'v_cmp_nle_f32 vcc, v{T+2}, v{T+7}', f'v_and_b32 v{T+3}, 0xfffffe00, v{T+6}', f'v_and_b32 v{T}, 1, v7', f'v_lshlrev_b32 v{T}, 14, v{T}',
       f's_cmp_lg_u64 vcc, 0', f's_cselect_b32 s{S}, 1, 0', f'v_mov_b32 v{T+2}, s{S}',
       I(f'ds_write_b32 v{T+3}, v{T+2} offset:512',tag=lxW),
       f'v_bfe_u32 v{T+1}, v7, 1, 1', f'v_lshl_add_u32 v{T}, v{T+1}, 13, v{T}', f'v_xor_b32 v{T+6}, 16384, v{T+6}', f'v_mov_b32 v{T+3}, 0']
    c+=[f's_mov_b32 s{S_WM}, s4', f's_mov_b32 s{S_HP}, s6', f's_mov_b32 s{S_HP+1}, s7']
    for j in (2,3): c+=[f's_add_u32 s{S}, s{S_H}, {j}', f's_and_b32 s{S}, s{S}, 3', f's_and_b32 s{S+1}, s{S_H}, 28', f's_add_u32 s{S}, s{S}, s{S+1}', f's_lshl_b32 s{S_HP+j}, s{S}, 17']
    c+=['s_waitcnt lgkmcnt(0)','s_barrier',
       I(f'ds_read_b32 v{V_S}, v{T} offset:{32768+7168+512}',tag=lxR),
       I(f'ds_read_b64 v[{V_L+4}:{V_L+5}], v{T+6}',tag=lxR)]
    d2=[wo_dma(2,n,False) for n in range(8)]
    for j in range(12):
        if j<8: c+=d2[j][0]
        c.append(I(f'ds_read_b128 v[{V_P+4*j}:{V_P+4*j+3}], v{T+5} offset:{j*1024}',tag=('R','ox',None,0,32768,True)))
        if j<8: c.append(d2[j][1])
    c+=['s_waitcnt lgkmcnt(12)', f'v_cmp_ne_u32 vcc, 0, v{V_S}', f'v_add_f32 v{V_L}, v{V_L}, v{V_L+4}', f'v_add_f32 v{V_L+1}, v{V_L+1}, v{V_L+5}']
    for j in range(12,16): c.append(I(f'ds_read_b128 v[{V_P+4*j}:{V_P+4*j+3}], v{T+5} offset:{j*1024}',tag=('R','ox',None,0,32768,True)))
    c+=[f's_cmp_lg_u64 vcc, 0', f's_cselect_b32 s{S}, 1, 0', f's_andn2_b32 s{S}, s{S}, s{S_PASS}', 's_cbranch_scc1 K2_SLOW']
    c+=xlane_multi([V_L,V_L+1],[T,T+1],'v_add_f32')
    c+=[f'v_rcp_f32 v{T}, v{V_L}', f'v_rcp_f32 v{T+1}, v{V_L+1}']
    c+=[f's_cmp_eq_u32 s{S_I}, 7', 's_cbranch_scc0 F_ARRX', 's_waitcnt vmcnt(8)']+flag(3,T+2,T+3)+['F_ARRX:']
    for b in range(2):
        for u in range(4):
            r=V_OO+b*32+u*8; p=V_P+b*32+u*8
            c+=[f'v_pk_add_f32 v[{r+j}:{r+j+1}], v[{r+j}:{r+j+1}], v[{p+j}:{p+j+1}]' for j in range(0,8,2)]
            c+=[f'v_pk_mul_f32 v[{r+j}:{r+j+1}], v[{r+j}:{r+j+1}], v[{T}:{T+1}] op_sel:[0,{b}] op_sel_hi:[1,{b}]' for j in range(0,8,2)]
            c+=[f'v_cvt_pk_bf16_f32 v{r+j}, v{r+2*j}, v{r+2*j+1}' for j in range(4)]
            c+=[I(f'buffer_store_dwordx4 v[{r}:{r+3}], v{V_L16}, s[16:19], s{S_CO+b} offen offset:{u*1024} sc1',tag=('K','cl'))]
            if b==0 and u==0:
                W=V_S
                c+=[f'v_lshrrev_b32 v{W}, 2, v7', f'v_lshlrev_b32 v{W}, 7, v{W}', f'v_and_b32 v{W+1}, 3, v7', f'v_lshl_add_u32 v{W}, v{W+1}, 3, v{W}',
                    f'v_bfe_u32 v{W+1}, v7, 3, 2', f'v_lshl_add_u32 v{W}, v{W+1}, 5, v{W}', f'v_add_u32 v{W}, 131072, v{W}']
                for c4 in range(4): c.append(f'v_xor_b32 v{VW+c4}, {c4*32}, v{W}')
            if b==1 and u>=2: c+=[w_read(0,0,uu,hf,0) for uu in (2*(u-2),2*(u-2)+1) for hf in range(2)]
    return c

CS=4160; HB=4*CS+512; CHB=HB+4096; CV0=98304
def gemm(spin,OPT,SIDE):
    T=V_T; S=S_T
    mf=[];V=[];Sq=[];EV=[];pre={};G=[];marks=[]
    groups=[(0,c,(2,3,0,1)) for c in range(8)]
    for j in SORD:
        for c in range(8): groups.append((j,c,(2,3)))
    for c in range(8): groups.append((1,c,(0,1)))
    for c in range(8):
        for j in (2,3): groups.append((j,c,(0,1)))
    gstart=[]; done={}
    for k,(j,c,blks) in enumerate(groups):
        gstart.append(len(mf))
        for b in blks:
            for u in range(4):
                W=(k%4)*16+u*4; A=rng(*acc(b,c))
                X=rng('v',own(b,u)) if j==0 else rng(*peer(b,j,u))
                mf.append(f'{MF} {A}, a[{W}:{W+3}], {X}, {"0" if (j==0 and u==0) else A}')
            done[(b,c)]=len(mf)-1
    NG=len(mf)
    gY1=128-22; gY1b=192-20
    for k in range(1,len(groups)):
        j,c,blks=groups[k]
        lo = gstart[k-1] if k<=7 else (gY1+2 if k==8 else (gY1+11 if k==9 else gstart[k-2]))
        for q in range(8): EV.append((lo+q,F(w_read(j,c,q//2,q%2,k),lo=lo+q,hi=lo+q+(0 if k==7 else 3))))
    for c4 in range(4): V.append(F(f'v_subrev_u32 v{VW+4+c4}, 65536, v{VW+c4}',lo=2,hi=40))
    for c4 in range(4): V.append(F(f'v_subrev_u32 v{VW+c4}, 131072, v{VW+c4}',lo=gY1+4,hi=gY1b-4))
    def bg(ops,lo,need):
        for x in ops: G.append(F(x,lo=lo))
        marks.append((G[-1].i,need))
    def dmas(lst,gaps):
        prev=None
        for (prs,x),g in zip(lst,gaps):
            if prev is None:
                for q,p in enumerate(prs): Sq.append(F(p,lo=g-3+q,hi=g-2+q))
            else: prev.post=[I(p) for p in prs]
            prev=F(x,lo=g,hi=g+2); EV.append((g,prev))
    pre[1]=['s_barrier']
    g0w=OPT.get('yw3',9)
    dmas([wo_dma(1,7,False)]+[wo_dma(3,n,False) for n in range(8)],[g for g in range(g0w,100) if g%16>=9 and g%2==1][:9])
    glate=OPT.get('ylate',40)
    bg(pc_setup()+cx_setup((2,3,0,1),S+1)+['v_lshrrev_b32 v32, 4, v7','v_lshlrev_b32 v32, 12, v32','v_mov_b32 v34, 0'],0,glate)
    lc=f'buffer_load_dword v33, v32, s[16:19], s{S_PC} offen sc1'
    SIDE.extend(['F_LATE:', lc, 's_waitcnt vmcnt(0)']+spin('F_Y3',lc,'v_cmp_gt_u32 vcc, 3, v33',45)+[cload(b,j,u,V_L16) for j in SORD for b in (2,3) for u in range(4)]+['s_branch F_LATER'])
    pre.setdefault(glate,[]).extend([f's_cmp_eq_u32 s{S_EARLY}, 0','s_cbranch_scc1 F_LATE','F_LATER:'])
    pre.setdefault(125,[]).extend([f's_cmp_eq_u32 s{S_EARLY}, 1','s_cbranch_scc1 F_ARRL','s_waitcnt vmcnt(0)','F_ARRL:'])
    g4=OPT.get('yf4',76)
    pre.setdefault(g4,[]).extend(['STAMP:','s_waitcnt vmkey(cl)']+flag(4,35,34)+['STAMP:'])
    pre.setdefault(gY1-1,[]).append('s_waitcnt vmkey(wo2) lgkmcnt(0)'); pre.setdefault(gY1,[]).append('s_barrier')
    pre.setdefault(gY1b-1,[]).append('s_waitcnt vmkey(wo1|wo3)'); pre.setdefault(gY1b,[]).append('s_barrier')
    S_PO=46
    sc=[f's_and_b32 s{S+1}, s{S_H}, 3', f's_lshl_b32 s{S+1}, s{S+1}, 15', f's_and_b32 s{S+2}, s2, 7', f's_lshl_b32 s{S+2}, s{S+2}, 10', f's_add_u32 s{S+1}, s{S+1}, s{S+2}', f's_add_u32 s{S+1}, s{S+1}, {WS_P}']
    for b in range(4): sc+=[f's_lshl_b32 s{S_PO+b}, s{S_RB+b}, 17', f's_add_u32 s{S_PO+b}, s{S_PO+b}, s{S+1}']
    SC=sc
    g2=OPT.get('yp2',140); gc2=g2+OPT.get('yd',40)
    EV.append((g2,F(I(lc,tag=('K','p4')),lo=g2,hi=g2)))
    pre.setdefault(gc2,[]).extend(['STAMP:','s_waitcnt vmkey(p4)']+spin('F_Y4',lc,'v_cmp_gt_u32 vcc, 4, v33',45)+['STAMP:'])
    for q,(j,b,u) in enumerate([(j,b,u) for j in (1,2,3) for b in (0,1) for u in range(4)]):
        g=gc2+1+q*OPT.get('ylg',5)
        EV.append((g,F(cload(b,j,u,V_L16),lo=g,hi=g+1)))
    gsp=gc2+1+24*OPT.get('ylg',5)
    for g in (255,319,383): pre.setdefault(g,[]).append('STAMP:')
    pairs=sorted([(done[(b,2*u+1)],b,u) for b in range(4) for u in range(4)])
    nsp=0
    for gd,b,u in pairs:
        k0,r0=acc(b,2*u); k1,r1=acc(b,2*u+1); lo=gd+5; ops=[]
        if k0=='a':
            t=192+u*8; ops=[f'v_accvgpr_read_b32 v{t+j}, a{r0+j}' for j in range(8)]; r0=t; r1=t+4
        ops+=[f'v_cvt_pk_bf16_f32 v{r0+j}, v{src}, v{src+1}' for j,src in enumerate((r0,r0+2,r1,r1+2))]
        if b>=2: lo=max(lo,gsp+nsp*OPT.get('ysg',8)); nsp+=1
        ops+=[f's_add_u32 s{S}, s{S_PO+b}, {u*8192}', I(f'buffer_store_dwordx4 v[{r0}:{r0+3}], v{V_L16}, s[16:19], s{S} offen sc1',tag=('K','ps' if b>=2 else 'pl'))]
        for x in ops: V.append(F(x,lo=lo,hi=lo+(14 if b>=2 else 6)))
    S_PV=50
    cs=['s_mov_b32 s68, s94', 's_and_b32 s69, s95, 0xffff', f's_mov_b32 s70, {2048*1024}', 's_mov_b32 s71, 0x20000',
        f's_and_b32 s{S_PV}, s{S_FL}, {0xffffffff^(31<<12):#x}', 'v_lshrrev_b32 v36, 1, v7','v_lshlrev_b32 v36, 12, v36',
        'v_lshrrev_b32 v51, 5, v7', 'v_bfe_u32 v48, v7, 4, 1',
        f's_and_b32 s{S+1}, s2, 7', f's_lshl_b32 s{S+1}, s{S+1}, 5', 'v_and_b32 v9, 31, v7', f'v_add_u32 v9, s{S+1}, v9',
        f's_lshr_b32 s{S+1}, s2, 3', f's_lshl_b32 s{S+1}, s{S+1}, 6', f's_lshl_b32 s{S+2}, s{S_WAVE}, 4', f's_add_u32 s{S+1}, s{S+1}, s{S+2}', 'v_lshlrev_b32 v10, 3, v51', f'v_add_u32 v10, s{S+1}, v10',
        'v_lshlrev_b32 v8, 10, v10', 'v_lshl_add_u32 v8, v9, 2, v8', 's_movk_i32 s77, 4096',
        'v_lshlrev_b32 v14, 13, v9','v_lshrrev_b32 v15, 8, v10','v_lshl_add_u32 v14, v15, 10, v14','v_bfe_u32 v15, v10, 4, 4','v_lshl_add_u32 v14, v15, 4, v14','v_lshl_add_u32 v14, v51, 9, v14', f'v_add_u32 v14, {WS_Z}, v14',
        'v_lshlrev_b32 v15, 11, v10','v_lshl_add_u32 v15, v9, 2, v15']
    gq=OPT.get('yq'); gpv=(gq-34) if gq else g2-1
    bg(cs,glate+1,gpv-1)
    bg(SC,glate+1,200)
    lv=f'buffer_load_dword v37, v36, s[16:19], s{S_PV} offen sc1'
    EV.append((gpv,F(I(lv,tag=('K','pv')),lo=gpv,hi=gpv)))
    pre.setdefault(gq+7 if gq else gc2,[]).extend(['s_waitcnt vmkey(pv)']+spin('F_YV',lv,'v_cmp_gt_u32 vcc, 2, v37',45))
    qz=[f'buffer_load_dword v{52+t}, v8, s[68:71], {"0" if t<4 else "s77"} offen offset:{(t%4)*1024}' for t in range(8)]
    qz+=[f'buffer_load_dwordx4 v[{40+4*g}:{43+4*g}], v14, s[16:19], 0 offen offset:{g*256} sc1' for g in range(2)]
    gq=OPT.get('yq')
    if gq:
        for q,x in enumerate(qz): EV.append((gq+q,F(x,lo=gq+q,hi=gq+q+1)))
        qz=[]
    g5f=OPT.get('yf5',gsp+8*OPT.get('ysg',8)+60)
    pre.setdefault(g5f,[]).extend(['STAMP:','s_waitcnt vmkey(ps)']+flag(5,35,34)+['STAMP:'])
    S_RR=32; S_PP=38
    rs=['v_lshrrev_b32 v38, 3, v7','v_lshlrev_b32 v38, 9, v38',
        f's_and_b32 s{S+1}, s2, 7', f's_lshl_b32 s{S+2}, s{S_I}, 3', f's_add_u32 s41, s{S+2}, s{S+1}', f's_sub_u32 s42, 120, s{S+2}', f's_add_u32 s42, s42, s{S+1}',
        f's_and_b32 s{S+2}, s{S_FL}, {0xffffffff^(31<<7):#x}', f's_and_b32 s{S+3}, s{S+1}, 3', f's_lshl_b32 s{S+3}, s{S+3}, 7', f's_add_u32 s{S_PP}, s{S+2}, s{S+3}',
        f's_lshl_b32 s{S+1}, s{S+1}, 2', f's_lshr_b32 s{S+3}, 0x20313120, s{S+1}', f's_and_b32 s{S+3}, s{S+3}, 3', f's_lshl_b32 s{S+3}, s{S+3}, 7', f's_add_u32 s{S_PP+1}, s{S+2}, s{S+3}',
        f's_and_b32 s{S+1}, s{S_H}, 3', f's_lshl_b32 s{S+2}, s{S+1}, 15', f's_lshl_b32 s{S+3}, s{S_WAVE}, 13', f's_add_u32 s{S+2}, s{S+2}, s{S+3}', f's_add_u32 s{S+2}, s{S+2}, {WS_P}']
    for q in range(2): rs+=[f's_lshl_b32 s{S_RR+q}, s{41+q}, 17', f's_add_u32 s{S_RR+q}, s{S_RR+q}, s{S+2}', f's_add_u32 s{S_RR+2+q}, s{S_RR+q}, 4096']
    rs+=[f's_lshl_b32 s{S+1}, s{S+1}, 8', f's_lshl_b32 s{S+3}, s{S_WAVE}, 6', f's_add_u32 s{S+1}, s{S+1}, s{S+3}', f's_add_u32 s{S+1}, s{S+1}, 1024']
    for q in range(2): rs+=[f's_lshl_b32 s{S_RR+4+q}, s{41+q}, 15', f's_add_u32 s{S_RR+4+q}, s{S_RR+4+q}, s{S+1}']
    rs+=['s_mov_b32 s12, s92','s_and_b32 s13, s93, 0xffff',
         'v_and_b32 v39, 15, v7','v_lshlrev_b32 v39, 11, v39','v_lshl_add_u32 v39, v48, 5, v39','v_lshl_add_u32 v39, v51, 4, v39']
    g5=NG-OPT.get('yp5',14)
    bg(rs,gsp+2,g5)
    lp=lambda q: f'buffer_load_dword v33, v38, s[16:19], s{S_PP+q} offen sc1'
    EV.append((g5,F(I(lp(0),tag=('K','p5')),lo=g5,hi=g5)))
    RB=128
    def pload(q,x): return f'buffer_load_dwordx4 v[{RB+q*32+4*x}:{RB+q*32+4*x+3}], v{V_L16}, s[16:19], s{S_RR+q+(2 if x>=4 else 0)} offen offset:{(x&3)*1024} sc1'
    EV.sort(key=lambda e:e[0]); Sq.sort(key=lambda f:f.lo); V.sort(key=lambda f:f.lo)
    lateV=[f.i for f in V if f.lo>=NG-1]; V=[f for f in V if f.lo<NG-1]
    D=[e[1] for e in EV]
    for Q in (V,D,Sq):
        for j in range(len(Q)-2,-1,-1): Q[j].hi=max(min(Q[j].hi,Q[j+1].hi),Q[j].lo)
    code,over=schedule(mf,V,D,Sq,pre,G)
    for x,lim in marks:
        k=[j for j,y in enumerate(code) if y is x][0]; ng=sum(y.kind=='mfma' for y in code[:k])
        assert ng<=lim,(x.text,ng,lim)
    lo=lambda d,s: f'v_lshlrev_b32 v{d}, 16, v{s}'
    hi=lambda d,s: f'v_and_b32 v{d}, 0xffff0000, v{s}'
    def reduce(q):
        b=RB+q*32; O=192+q*16; c=[]
        for x in range(8):
            for d in range(4):
                r=b+4*x+d; t=O+8+2*(d%2)
                if x==0: c+=[lo(O+2*d,r), hi(O+2*d+1,r)]
                else: c+=[lo(t,r), hi(t+1,r), f'v_pk_add_f32 v[{O+2*d}:{O+2*d+1}], v[{O+2*d}:{O+2*d+1}], v[{t}:{t+1}]']
        c+=[f'v_cvt_pk_bf16_f32 v{O+d}, v{O+2*d}, v{O+2*d+1}' for d in range(4)]
        c+=['s_nop 1', f'v_permlane16_swap_b32 v{O}, v{O+2}', f'v_permlane16_swap_b32 v{O+1}, v{O+3}',
            f'buffer_store_dwordx4 v[{O}:{O+3}], v39, s[12:15], s{S_RR+4+q} offen']
        return c
    el=[]
    for k in range(8):
        el+=[lo(224,52+k), hi(225,52+k), lo(226,40+k), hi(227,40+k), 'v_pk_mul_f32 v[224:225], v[224:225], v[226:227]', f'v_cvt_pk_bf16_f32 v{40+k}, v224, v225',
            f's_movk_i32 s{S}, {(k>>1)*4096}', f'buffer_store_dword v{40+k}, v15, s[12:15], s{S} offen offset:{(k&1)*2048}']
    p0=[pload(0,x) for x in range(8)]
    t=['STAMP:']+lateV+['s_waitcnt vmkey(p5)', 'v_cmp_gt_u32 vcc, 5, v33', 's_nop 0', 's_cbranch_vccnz F_T2']
    t+=p0+qz+['s_waitcnt vmkey(pl)']+flag(6,35,34)+['F_T3:','STAMP:']
    SIDE.extend(['F_T2:']+qz+[f's_waitcnt vmcnt({len(qz)})']+flag(6,35,34)+[lp(0),'s_waitcnt vmcnt(0)']+spin('F_Y5',lp(0),'v_cmp_gt_u32 vcc, 5, v33',45)+p0+['s_waitcnt vmcnt(0)','s_branch F_T3'])
    r0=reduce(0)
    t+=r0[:-1]+[I(lp(1),tag=('K','p6'))]+r0[-1:]
    t+=['STAMP:','s_waitcnt vmkey(p6)']+spin('F_Y6',lp(1),'v_cmp_gt_u32 vcc, 6, v33',45)+['STAMP:']
    t+=[pload(1,x) for x in range(8)]+el+['STAMP:']+reduce(1)
    return code,parse(t),over
```

```python
import sys
import gen, fused, k2, stamp, attn
BASE=dict(fused.OPT)
def mk(path, diag=False, single=False, real=False, **opt):
    fused.OPT.clear(); fused.OPT.update(BASE); fused.OPT.update(diag=diag, **opt)
    stamp.REAL=real
    ks=[dict(name='fa_kernel', code=fused.build(), grid=256, block=256, lds=163840, vgpr=512, acc=256, sgpr=102)]
    gen.emit(ks, path, single)
if __name__=='__main__':
    mk('t_f1.s',1)
    mk('t_f2.s',3)
    mk('t_f3.s',2)
    mk('t_f4.s',2,stB=[1,1,1,1,1,1,2,2],stV=6,st0=5)
    mk('o1.s',0,True)
    mk('o2.s',0,True,stB=[1,1,1,1,1,1,2,2],stV=6,st0=5)
    mk('o3.s',0,True,rot=0,touch0=1)
    mk('o4.s',0,True,ntw='',ntw2='',ntcv='')
```
